```python
import torch

def _softmax(x, axis=-1):
    return torch.softmax(x, dim=axis)
def _gelu(x):
    return torch.nn.functional.gelu(x, approximate="tanh")
def _silu(x):
    return torch.nn.functional.silu(x)
def _sigmoid(x):
    return torch.sigmoid(x)
def _layernorm(x, axis=-1, eps=1e-5):
    m = x.mean(dim=axis, keepdim=True)
    v = x.var(dim=axis, keepdim=True, unbiased=False)
    return (x - m) / torch.sqrt(v + eps)
def _scatter_add(tgt, idx, src, axis=0):
    return tgt.clone().index_add_(axis, idx, src)
def _segment_sum(src, seg, n):
    out = torch.zeros((n,) + src.shape[1:], dtype=src.dtype)
    return out.index_add_(0, seg, src)
def _pad(x, pw):
    flat = tuple(v for pair in reversed(pw) for v in pair)
    return torch.nn.functional.pad(x, flat)

kernel_name = 'standalone__mha_softmax__near_ridge'

def setup_inputs():

    _w = (lambda a: (lambda t: t.to(torch.bfloat16) if t.is_floating_point() else t)(torch.as_tensor(a)))
    B, H, Sq, Sk, D = 16, 32, 256, 256, 192
    return {
        "q": _w((lambda *s: torch.randn(*s, dtype=torch.bfloat16) * 0.8)(B, H, Sq, D)),
        "k": _w((lambda *s: torch.randn(*s, dtype=torch.bfloat16) * 0.8)(B, H, Sk, D)),
        "v": _w((lambda *s: torch.randn(*s, dtype=torch.bfloat16) * 0.05)(B, H, Sk, D)),
    }

def reference(q, k, v):
    scale = q.shape[-1] ** -0.5
    scores = torch.einsum("bhqd,bhkd->bhqk", q, k) * scale
    p = _softmax(scores, axis=-1)
    return torch.einsum("bhqk,bhkd->bhqd", p, v)
```

```python
import sys, math, struct, argparse

HEADER = """; Kernarg layout for this problem (48 bytes, ptrs only, base s[0:1]):
"""

NAME = "standalone__mha_softmax__near_ridge_kernel"
HEAD_BYTES = 256 * 384
TILE_BYTES = 64 * 384
TOTAL_BYTES = 512 * HEAD_BYTES

def f32bits(x):
    return struct.unpack("<I", struct.pack("<f", x))[0]

class Gen:
    def __init__(self, opt):
        self.o = opt
        self.L = []
        self.vm = []
        self.lg = []
    def e(self, s):
        self.L.append("    " + s)
    def c(self, s):
        self.L.append("    ; " + s)
    def label(self, s):
        self.L.append(s + ":")
    def vm_issue(self, tag):
        self.vm.append(tag)
    def vm_wait(self, tags):
        last = -1
        for i, t in enumerate(self.vm):
            if t in tags:
                last = i
        assert last >= 0, tags
        n = len(self.vm) - 1 - last
        assert n <= 63
        return n
    def lg_issue(self, tag):
        self.lg.append(tag)
    def lg_wait(self, tag):
        last = -1
        for i, t in enumerate(self.lg):
            if t == tag:
                last = i
        assert last >= 0, tag
        n = len(self.lg) - 1 - last
        assert n <= 15, n
        return n

S0 = 0
OREG = [64, 80, 96, 112, 128, 144]
QR = 160
FR = 208
NF = 6
VQ = 232
VD = 233
KB = 234
VB = 238
VM = 242
VL = 243
VT = 247
SRD_Q, SRD_K, SRD_V, SRD_O = 12, 16, 20, 24
S_W1024 = 28
S_HEAD = [29, 30]
S_TOFF = 31
S_C = 32
S_TMP = 33

def build(opt):
    g = Gen(opt)
    e = g.e
    NS = opt.nslot
    ld_flags = (" nt" if opt.nt_load else "")
    q_flags = (" nt" if opt.nt_q else "")
    st_flags = (" nt" if opt.nt_store else "")

    e("s_cmp_ge_u32 s2, 256")
    e("s_cbranch_scc1 L_end")
    e("s_load_dwordx4 s[4:7], s[0:1], 0")
    e("s_load_dwordx4 s[8:11], s[0:1], 16")
    e("v_lshrrev_b32 v1, 6, v0")
    e("v_and_b32 v2, 63, v0")
    e("v_readfirstlane_b32 s3, v1")
    e("v_and_b32 v3, 31, v2")
    e("v_lshrrev_b32 v4, 5, v2")
    e("v_lshl_add_u32 v5, v1, 5, v3")
    e("v_mul_u32_u24 v5, 384, v5")
    e(f"v_lshl_add_u32 v{VQ}, v4, 4, v5")
    e("v_lshrrev_b32 v5, 3, v2")
    e("v_lshl_add_u32 v5, v1, 3, v5")
    e("v_bfe_u32 v6, v2, 4, 1")
    e("v_lshlrev_b32 v6, 2, v6")
    e("v_lshl_or_b32 v6, v4, 1, v6")
    e("v_and_b32 v7, 1, v1")
    e("v_or_b32 v6, v6, v7")
    e("v_and_b32 v7, 7, v2")
    e("v_xor_b32 v6, v6, v7")
    e("v_mul_u32_u24 v5, 384, v5")
    e(f"v_lshl_add_u32 v{VD}, v6, 4, v5")
    e("v_bfe_u32 v5, v3, 1, 1")
    e("v_lshlrev_b32 v5, 2, v5")
    e("v_bfe_u32 v6, v3, 2, 1")
    e("v_lshl_or_b32 v5, v6, 1, v5")
    e("v_bfe_u32 v6, v3, 3, 1")
    e("v_or_b32 v5, v5, v6")
    e("v_xor_b32 v5, v5, v4")
    e("v_lshlrev_b32 v5, 4, v5")
    e(f"v_lshl_add_u32 v{KB}, v3, 7, v5")
    for j in range(1, 4):
        e(f"v_xor_b32 v{KB+j}, {32*j}, v{KB}")
    e("v_bfe_u32 v5, v2, 2, 2")
    e("v_lshl_add_u32 v6, v4, 2, v5")
    e("v_lshlrev_b32 v6, 7, v6")
    e("v_bfe_u32 v7, v2, 4, 1")
    e("v_lshlrev_b32 v7, 1, v7")
    e("v_bfe_u32 v8, v2, 1, 1")
    e("v_or_b32 v7, v7, v8")
    e("v_bfe_u32 v8, v2, 3, 1")
    e("v_lshlrev_b32 v8, 2, v8")
    e("v_lshl_or_b32 v8, v4, 1, v8")
    e("v_xor_b32 v7, v7, v8")
    e("v_lshl_add_u32 v6, v7, 4, v6")
    e("v_and_b32 v7, 1, v2")
    e(f"v_lshl_add_u32 v{VB}, v7, 3, v6")
    e(f"v_xor_b32 v{VB+1}, 16, v{VB}")
    e(f"v_xor_b32 v{VB+2}, 64, v{VB}")
    e(f"v_xor_b32 v{VB+3}, 80, v{VB}")
    e(f"s_lshl_b32 s{S_W1024}, s3, 10")
    if opt.headmap == 0:
        e(f"s_mul_i32 s{S_HEAD[0]}, s2, {HEAD_BYTES}")
        e(f"s_add_u32 s{S_HEAD[1]}, s{S_HEAD[0]}, {256*HEAD_BYTES}")
    else:
        e(f"s_mul_i32 s{S_HEAD[0]}, s2, {2*HEAD_BYTES}")
        e(f"s_add_u32 s{S_HEAD[1]}, s{S_HEAD[0]}, {HEAD_BYTES}")
    c = (192 ** -0.5) * math.log2(math.e)
    e(f"s_mov_b32 s{S_C}, 0x{f32bits(c):08x}")
    e("s_waitcnt lgkmcnt(0)")
    for srd, sp in ((SRD_Q, 4), (SRD_K, 6), (SRD_V, 8), (SRD_O, 10)):
        e(f"s_mov_b32 s{srd}, s{sp}")
        e(f"s_mov_b32 s{srd+1}, s{sp+1}")
        e(f"s_mov_b32 s{srd+2}, {TOTAL_BYTES}")
        e(f"s_mov_b32 s{srd+3}, 0x00020000")

    def issue_q(h):
        for s in range(12):
            e(f"buffer_load_dwordx4 v[{QR+4*s}:{QR+4*s+3}], v{VQ}, s[{SRD_Q}:{SRD_Q+3}], s{S_HEAD[h]} offen offset:{32*s}{q_flags}")
            g.vm_issue(("Q", h))

    def issue_tile(T):
        h = T // 8
        isv = (T % 8) >= 4
        t = T % 4
        slot = T % NS
        srd = SRD_V if isv else SRD_K
        e(f"s_add_u32 s{S_TOFF}, s{S_HEAD[h]}, {t*TILE_BYTES}")
        for b in range(3):
            e(f"s_add_u32 m0, s{S_W1024}, {slot*TILE_BYTES + b*8064}")
            e("s_nop 0")
            e(f"buffer_load_dwordx4 v{VD}, s[{srd}:{srd+3}], s{S_TOFF} offen offset:{128*b}{ld_flags} lds")
            g.vm_issue(("T", T))

    state = {"kb": 0, "vb": 0}
    def set_base(kind, slot):
        grp = (slot // 2) * 2 * TILE_BYTES
        cur = state[kind]
        if cur != grp:
            r0 = KB if kind == "kb" else VB
            for j in range(4):
                e(f"v_add_u32 v{r0+j}, 0x{(grp-cur) & 0xffffffff:x}, v{r0+j}")
            state[kind] = grp
        return slot * TILE_BYTES - grp

    def k_phase(T):
        t = T % 4
        slot = T % NS
        ib = set_base("kb", slot)
        items = []
        for s in range(12):
            for u in range(2):
                items.append((s, u))
        def rd(i):
            s, u = items[i]
            fr = FR + 4 * (i % NF)
            e(f"ds_read_b128 v[{fr}:{fr+3}], v{KB + (s & 3)} offset:{ib + (s >> 2)*8192 + u*4096}")
            g.lg_issue(("k", i))
        g.lg = []
        for i in range(NF - 1):
            rd(i)
        for i, (s, u) in enumerate(items):
            e(f"s_waitcnt lgkmcnt({g.lg_wait(('k', i))})")
            fr = FR + 4 * (i % NF)
            d = S0 + 16 * (2 * t + u)
            cin = "0" if s == 0 else f"v[{d}:{d+15}]"
            e(f"v_mfma_f32_32x32x16_bf16 v[{d}:{d+15}], v[{fr}:{fr+3}], v[{QR+4*s}:{QR+4*s+3}], {cin}")
            if i + NF - 1 < len(items):
                rd(i + NF - 1)

    def v_phase(T):
        t = T % 4
        slot = T % NS
        ib = set_base("vb", slot)
        items = []
        for ks in range(4):
            for dt in range(6):
                items.append((ks, dt))
        def rd(i):
            ks, dt = items[i]
            fr = FR + 4 * (i % NF)
            for gg in range(2):
                e(f"ds_read_b64_tr_b16 v[{fr+2*gg}:{fr+2*gg+1}], v{VB + 2*(dt & 1) + gg} offset:{ib + (dt >> 1)*8192 + ks*2048 + gg*1024}")
                g.lg_issue(("v", i))
        g.lg = []
        for i in range(NF - 1):
            rd(i)
        for i, (ks, dt) in enumerate(items):
            e(f"s_waitcnt lgkmcnt({g.lg_wait(('v', i))})")
            fr = FR + 4 * (i % NF)
            d = OREG[dt]
            pk = S0 + 4 * (4 * t + ks)
            cin = "0" if (t == 0 and ks == 0) else f"v[{d}:{d+15}]"
            e(f"v_mfma_f32_32x32x16_bf16 v[{d}:{d+15}], v[{fr}:{fr+3}], v[{pk}:{pk+3}], {cin}")
            if i + NF - 1 < len(items):
                rd(i + NF - 1)

    def softmax():
        e("s_nop 7")
        e("s_nop 3")
        ch = [VL + i for i in range(4)]
        for q in range(4):
            b = 32 * q
            e(f"v_max3_f32 v{ch[q]}, v{b}, v{b+1}, v{b+2}")
        for k in range(14):
            for q in range(4):
                b = 32 * q + 3 + 2 * k
                e(f"v_max3_f32 v{ch[q]}, v{ch[q]}, v{b}, v{b+1}")
        for q in range(4):
            e(f"v_max_f32 v{ch[q]}, v{ch[q]}, v{32*q+31}")
        e(f"v_max3_f32 v{VM}, v{ch[0]}, v{ch[1]}, v{ch[2]}")
        e(f"v_max_f32 v{VM}, v{VM}, v{ch[3]}")
        e(f"v_mov_b32 v{VT}, v{VM}")
        e("s_nop 1")
        e(f"v_permlane32_swap_b32 v{VM}, v{VT}")
        e("s_nop 1")
        e(f"v_max_f32 v{VM}, v{VM}, v{VT}")
        e(f"v_mul_f32 v{VM}, s{S_C}, v{VM}")
        first = True
        for T in range(8):
            b = 16 * T
            for i in range(16):
                e(f"v_fma_f32 v{b+i}, v{b+i}, s{S_C}, -v{VM}")
            for i in range(16):
                e(f"v_exp_f32 v{b+i}, v{b+i}")
            for i in range(16):
                if T == 0 and i < 4:
                    e(f"v_mov_b32 v{VL+i}, v{b+i}")
                else:
                    e(f"v_add_f32 v{VL + (i & 3)}, v{VL + (i & 3)}, v{b+i}")
            for j in range(8):
                e(f"v_cvt_pk_bf16_f32 v{8*T+j}, v{b+2*j}, v{b+2*j+1}")
        e(f"v_add_f32 v{VL}, v{VL}, v{VL+1}")
        e(f"v_add_f32 v{VL+2}, v{VL+2}, v{VL+3}")
        e(f"v_add_f32 v{VL}, v{VL}, v{VL+2}")
        e(f"v_mov_b32 v{VT}, v{VL}")
        e("s_nop 1")
        e(f"v_permlane32_swap_b32 v{VL}, v{VT}")
        e("s_nop 1")
        e(f"v_add_f32 v{VL}, v{VL}, v{VT}")
        e(f"v_rcp_f32 v{VL}, v{VL}")

    def epilogue(h):
        e("s_nop 7")
        e("s_nop 3")
        for dt in range(6):
            R = OREG[dt]
            for i in range(16):
                e(f"v_mul_f32 v{R+i}, v{R+i}, v{VL}")
            for gp in range(2):
                B = R + 8 * gp
                for j in range(4):
                    e(f"v_cvt_pk_bf16_f32 v{B+j}, v{B+2*j}, v{B+2*j+1}")
            e("s_nop 1")
            for gp in range(2):
                B = R + 8 * gp
                e(f"v_permlane32_swap_b32 v{B}, v{B+2}")
                e(f"v_permlane32_swap_b32 v{B+1}, v{B+3}")
            for gp in range(2):
                B = R + 8 * gp
                e(f"buffer_store_dwordx4 v[{B}:{B+3}], v{VQ}, s[{SRD_O}:{SRD_O+3}], s{S_HEAD[h]} offen offset:{64*dt+32*gp}{st_flags}")
                g.vm_issue(("O", h))

    issue_q(0)
    for T in range(NS):
        issue_tile(T)
    for p in range(16):
        h = p // 8
        g.c(f"---- phase {p}")
        tags = [("T", p)]
        if p % 8 == 0:
            tags.append(("Q", h))
        e(f"s_waitcnt vmcnt({g.vm_wait(tags)})")
        e("s_barrier")
        if p >= 1 and p + NS - 1 < 16:
            issue_tile(p + NS - 1)
        if p % 8 < 4:
            k_phase(p)
        else:
            v_phase(p)
        if p % 8 == 3:
            if h == 0:
                issue_q(1)
            softmax()
        if p % 8 == 7:
            epilogue(h)
    g.label("L_end")
    e("s_endpgm")

    out = HEADER
    out += f"; @launch grid=(256,1,1) block=(512,1,1) lds={NS*TILE_BYTES}\n"
    out += '.amdgcn_target "amdgcn-amd-amdhsa--gfx950"\n.text\n'
    out += f".globl {NAME}\n.p2align 8\n.type {NAME},@function\n{NAME}:\n"
    out += "\n".join(g.L) + "\n"
    out += f""".section .rodata,"a"
.p2align 6
.amdhsa_kernel {NAME}
  .amdhsa_next_free_vgpr 256
  .amdhsa_next_free_sgpr 48
  .amdhsa_accum_offset 256
  .amdhsa_group_segment_fixed_size 0
  .amdhsa_kernarg_size 48
  .amdhsa_user_sgpr_count 2
  .amdhsa_user_sgpr_kernarg_segment_ptr 1
  .amdhsa_system_sgpr_workgroup_id_x 1
.end_amdhsa_kernel
"""
    return out

if __name__ == "__main__":
    ap = argparse.ArgumentParser()
    ap.add_argument("-o", default="standalone__mha_softmax__near_ridge.s")
    ap.add_argument("--nslot", type=int, default=6)
    ap.add_argument("--nt_load", type=int, default=0)
    ap.add_argument("--nt_q", type=int, default=0)
    ap.add_argument("--nt_store", type=int, default=0)
    ap.add_argument("--headmap", type=int, default=0)
    opt = ap.parse_args()
    open(opt.o, "w").write(build(opt))
```

```python
import sys, math, struct, argparse

HEADER = """; Kernarg layout for this problem (48 bytes, ptrs only, base s[0:1]):
;   offset   0: d_in[0] q  shape=(16, 32, 256, 192) dtype=bfloat16 strides=(3145728, 98304, 384, 2) contiguous=True
;   offset   8: d_in[1] k  shape=(16, 32, 256, 192) dtype=bfloat16 strides=(3145728, 98304, 384, 2) contiguous=True
;   offset  16: d_in[2] v  shape=(16, 32, 256, 192) dtype=bfloat16 strides=(3145728, 98304, 384, 2) contiguous=True
"""
NAME = "standalone__mha_softmax__near_ridge_kernel"
HEAD_BYTES = 256 * 384
TILE_BYTES = 64 * 384
TOTAL_BYTES = 512 * HEAD_BYTES
STG_PITCH = 144
STG_WAVE = 32 * STG_PITCH

def f32bits(x):
    return struct.unpack("<I", struct.pack("<f", x))[0]

OB = 128
def OREG(dt): return OB + 16 * dt
def QREG(s): return OB + 4 * s
FR = 224
VD = 244
AB = 245
KB0 = 249
MC = 250
VB0 = 251
VL = 252
VT0, VT1 = 254, 255
SW, SR, SO, INV = 0, 1, 2, 4
SRD_Q, SRD_K, SRD_V, SRD_O = 12, 16, 20, 24
S_W1024 = 28
S_HEAD = [29, 30]
S_TOFF = 31
S_C = 32
S_WH = 34
S_U = 35
S_STG = 36
S_SO = 37
S_W = 3

class Gen:
    def __init__(self, opt):
        self.o = opt
        self.L = []
        self.vm = []
        self.lg = []
    def e(self, s):
        self.L.append("    " + s)
    def c(self, s):
        self.L.append("    ; " + s)
    def label(self, s):
        self.L.append(s + ":")
    def vm_issue(self, tag):
        self.vm.append(tag)
    def vm_wait(self, tags):
        last = -1
        for i, t in enumerate(self.vm):
            if t in tags:
                last = i
        assert last >= 0, tags
        return min(63, len(self.vm) - 1 - last)
    def lg_issue(self, tag):
        self.lg.append(tag)
    def lg_wait(self, tag):
        last = -1
        for i, t in enumerate(self.lg):
            if t == tag:
                last = i
        assert last >= 0, tag
        return min(15, len(self.lg) - 1 - last)

def build(opt):
    g = Gen(opt)
    e = g.e
    NS = opt.nslot
    NF = opt.nf
    assert FR + 4 * NF <= VD
    STG0 = NS * TILE_BYTES
    LDS_BYTES = STG0 + 8 * STG_WAVE
    assert LDS_BYTES <= 163840
    fl = {"Q": opt.fl_q, "K": opt.fl_k, "V": opt.fl_v, "O": opt.fl_o}
    fl = {k: ((" " + v.replace("+", " ")) if v else "") for k, v in fl.items()}
    stamps = []
    def stamp(name):
        if not opt.stamp:
            return
        i = len(stamps)
        stamps.append(name)
        e(f"{'s_memtime' if opt.stamp == 2 else 's_memrealtime'} s[{48+2*i}:{49+2*i}]")

    e("s_cmp_ge_u32 s2, 256")
    e("s_cbranch_scc1 L_end")
    if opt.stamp:
        e("s_memtime s[44:45]")
        e("s_load_dwordx2 s[40:41], s[0:1], 40")
    stamp("start")
    e("s_load_dwordx4 s[4:7], s[0:1], 0")
    e("s_load_dwordx4 s[8:11], s[0:1], 16")
    e("v_lshrrev_b32 v1, 6, v0")
    e("v_and_b32 v2, 63, v0")
    e(f"v_readfirstlane_b32 s{S_W}, v1")
    e("v_and_b32 v3, 31, v2")
    e("v_lshrrev_b32 v4, 5, v2")
    e("v_lshrrev_b32 v5, 3, v2")
    e("v_lshl_add_u32 v5, v1, 3, v5")
    e("v_bfe_u32 v6, v2, 4, 1")
    e("v_lshlrev_b32 v6, 2, v6")
    e("v_lshl_or_b32 v6, v4, 1, v6")
    e("v_and_b32 v7, 1, v1")
    e("v_or_b32 v6, v6, v7")
    e("v_and_b32 v7, 7, v2")
    e("v_xor_b32 v6, v6, v7")
    e("v_mul_u32_u24 v5, 384, v5")
    e(f"v_lshl_add_u32 v{VD}, v6, 4, v5")
    e(f"s_lshl_b32 s{S_W1024}, s{S_W}, 10")
    if opt.headmap == 0:
        e(f"s_mul_i32 s{S_HEAD[0]}, s2, {HEAD_BYTES}")
        e(f"s_add_u32 s{S_HEAD[1]}, s{S_HEAD[0]}, {256*HEAD_BYTES}")
    else:
        e(f"s_mul_i32 s{S_HEAD[0]}, s2, {2*HEAD_BYTES}")
        e(f"s_add_u32 s{S_HEAD[1]}, s{S_HEAD[0]}, {HEAD_BYTES}")
    e("s_waitcnt lgkmcnt(0)")
    for srd, sp in ((SRD_Q, 4), (SRD_K, 6), (SRD_V, 8), (SRD_O, 10)):
        e(f"s_mov_b32 s{srd}, s{sp}")
        e(f"s_mov_b32 s{srd+1}, s{sp+1}")
        e(f"s_mov_b32 s{srd+2}, {TOTAL_BYTES}")
        e(f"s_mov_b32 s{srd+3}, 0x00020000")

    NT = 24
    def tile_kind(n):
        return "QKV"[(n % 12) // 4]
    def issue_tile(n):
        if n >= NT:
            return
        h = n // 12
        kind = tile_kind(n)
        t = n % 4
        slot = n % NS
        srd = {"Q": SRD_Q, "K": SRD_K, "V": SRD_V}[kind]
        e(f"s_add_u32 s{S_TOFF}, s{S_HEAD[h]}, {t*TILE_BYTES}")
        for b in range(3):
            e(f"s_add_u32 m0, s{S_W1024}, {slot*TILE_BYTES + b*8064}")
            e("s_nop 0")
            e(f"buffer_load_dwordx4 v{VD}, s[{srd}:{srd+3}], s{S_TOFF} offen offset:{128*b}{fl[kind]} lds")
            g.vm_issue(("T", n))
    def sync(n):
        g.c(f"---- sync tile {n} ({tile_kind(n)}{n%4})")
        e(f"s_waitcnt vmcnt({g.vm_wait([('T', n)])})")
        e("s_barrier")
        if n % 12 in (0, 3, 4, 5, 7, 8, 9, 11):
            stamp(f"t{n}")
        issue_tile(n - 2 + NS)

    for n in range(NS - 2):
        issue_tile(n)

    e("v_bfe_u32 v5, v3, 1, 1")
    e("v_lshlrev_b32 v5, 2, v5")
    e("v_bfe_u32 v6, v3, 2, 1")
    e("v_lshl_or_b32 v5, v6, 1, v5")
    e("v_bfe_u32 v6, v3, 3, 1")
    e("v_or_b32 v5, v5, v6")
    e("v_xor_b32 v5, v5, v4")
    e("v_lshlrev_b32 v5, 4, v5")
    e(f"v_lshl_add_u32 v{KB0}, v3, 7, v5")
    e("v_bfe_u32 v5, v2, 2, 2")
    e("v_lshl_add_u32 v6, v4, 2, v5")
    e("v_lshlrev_b32 v6, 7, v6")
    e("v_bfe_u32 v7, v2, 4, 1")
    e("v_lshlrev_b32 v7, 1, v7")
    e("v_bfe_u32 v8, v2, 1, 1")
    e("v_or_b32 v7, v7, v8")
    e("v_bfe_u32 v8, v2, 3, 1")
    e("v_lshlrev_b32 v8, 2, v8")
    e("v_lshl_or_b32 v8, v4, 1, v8")
    e("v_xor_b32 v7, v7, v8")
    e("v_lshl_add_u32 v6, v7, 4, v6")
    e("v_and_b32 v7, 1, v2")
    e(f"v_lshl_add_u32 v{VB0}, v7, 3, v6")
    c = (192 ** -0.5) * math.log2(math.e)
    e(f"s_mov_b32 s{S_C}, 0x{f32bits(c):08x}")
    e(f"s_mov_b32 s{S_C+1}, 0x{f32bits(c):08x}")
    e(f"s_lshr_b32 s{S_WH}, s{S_W}, 1")
    e(f"s_and_b32 s{S_U}, s{S_W}, 1")
    e(f"s_lshl_b32 s{S_U}, s{S_U}, 12")
    e(f"s_mul_i32 s{S_STG}, s{S_W}, {STG_WAVE}")
    e(f"s_add_u32 s{S_STG}, s{S_STG}, {STG0}")
    stamp("issued")

    def set_ab(n):
        kind = tile_kind(n)
        base = (n % NS) * TILE_BYTES
        if kind == "V":
            e(f"v_add_u32 v{AB}, {base}, v{VB0}")
            e(f"v_xor_b32 v{AB+1}, 16, v{AB}")
            e(f"v_xor_b32 v{AB+2}, 64, v{AB}")
            e(f"v_xor_b32 v{AB+3}, 0x50, v{AB}")
        else:
            e(f"v_add_u32 v{AB}, {base}, v{KB0}")
            if kind == "Q":
                e(f"v_add_u32 v{AB}, s{S_U}, v{AB}")
            for j in range(1, 4):
                e(f"v_xor_b32 v{AB+j}, {32*j}, v{AB}")

    lblc = [0]
    def q_read(n):
        j = n % 4
        lblc[0] += 1
        lab = f"L_q{lblc[0]}"
        e(f"s_cmp_eq_u32 s{S_WH}, {j}")
        e(f"s_cbranch_scc0 {lab}")
        set_ab(n)
        for s in range(12):
            e(f"ds_read_b128 v[{QREG(s)}:{QREG(s)+3}], v{AB + (s & 3)} offset:{(s >> 2)*8192}")
        e("s_waitcnt lgkmcnt(0)")
        g.label(lab)

    def exp_tile(T):
        b = 16 * T
        F = lambda i: f"v_pk_fma_f32 v[{b+2*i}:{b+2*i+1}], v[{b+2*i}:{b+2*i+1}], s[{S_C}:{S_C+1}], v[{MC}:{MC+1}] op_sel_hi:[1,1,0] neg_lo:[0,0,1] neg_hi:[0,0,1]"
        E = lambda i: f"v_exp_f32 v{b+i}, v{b+i}"
        if T == 0:
            A = lambda i: (f"v_pk_add_f32 v[{VL}:{VL+1}], v[{VL}:{VL+1}], v[{b+2*i}:{b+2*i+1}]" if i > 0 else
                           None)
        else:
            A = lambda i: f"v_pk_add_f32 v[{VL}:{VL+1}], v[{VL}:{VL+1}], v[{b+2*i}:{b+2*i+1}]"
        C = lambda i: f"v_cvt_pk_bf16_f32 v{b+i}, v{b+2*i}, v{b+2*i+1}"
        if opt.nopk:
            L = []
            for i in range(16):
                L.append(f"v_fma_f32 v{b+i}, v{b+i}, s{S_C}, -v{MC}")
            X = []
            for i in range(8):
                X += [L[2*i], L[2*i+1]]
            out = []
            out += [L[0], L[1], L[2], L[3]]
            for i in range(8):
                out += [E(2*i), E(2*i+1)]
                if i + 2 < 8:
                    out += [L[2*i+4], L[2*i+5]]
                if i >= 1:
                    k = i - 1
                    for r in (2*k, 2*k+1):
                        if T == 0 and k == 0:
                            out.append(f"v_mov_b32 v{VL + (r & 1)}, v{b+r}")
                        else:
                            out.append(f"v_add_f32 v{VL + (r & 1)}, v{VL + (r & 1)}, v{b+r}")
                    out.append(C(k))
            for r in (14, 15):
                out.append(f"v_add_f32 v{VL + (r & 1)}, v{VL + (r & 1)}, v{b+r}")
            out.append(C(7))
            return out
        out = [F(0), F(1)]
        for i in range(8):
            out += [E(2*i), E(2*i+1)]
            if i + 2 < 8:
                out.append(F(i + 2))
            if i >= 1:
                k = i - 1
                if T == 0 and k == 0:
                    out.append(f"v_mov_b32 v{VL}, v{b}")
                    out.append(f"v_mov_b32 v{VL+1}, v{b+1}")
                else:
                    out.append(A(k))
                out.append(C(k))
        out.append("s_nop 0")
        out.append(A(7))
        out.append(C(7))
        return out

    def max_tile(T):
        b = 16 * T
        out = []
        if T == 0:
            out.append(f"v_max3_f32 v{MC}, v{b}, v{b+1}, v{b+2}")
            for k in range(6):
                out.append(f"v_max3_f32 v{MC}, v{MC}, v{b+3+2*k}, v{b+4+2*k}")
            out.append(f"v_max_f32 v{MC}, v{MC}, v{b+15}")
        else:
            for k in range(8):
                out.append(f"v_max3_f32 v{MC}, v{MC}, v{b+2*k}, v{b+2*k+1}")
        return out

    def sm_head():
        out = ["s_nop 7", "s_nop 3"]
        out += max_tile(7)
        out += [f"v_mov_b32 v{VT0}, v{MC}", "s_nop 1",
                f"v_permlane32_swap_b32 v{MC}, v{VT0}", "s_nop 1",
                f"v_max_f32 v{MC}, v{MC}, v{VT0}",
                f"v_mul_f32 v{MC}, s{S_C}, v{MC}"]
        out += exp_tile(0)
        out += ["s_nop 1"]
        return out

    def inv_l():
        return [f"v_add_f32 v{VL}, v{VL}, v{VL+1}",
                f"v_mov_b32 v{VT0}, v{VL}", "s_nop 1",
                f"v_permlane32_swap_b32 v{VL}, v{VT0}", "s_nop 1",
                f"v_add_f32 v{VL}, v{VL}, v{VT0}",
                f"v_rcp_f32 v{INV}, v{VL}"]

    def ep_addr():
        return [f"v_mbcnt_lo_u32_b32 v{VT0}, -1, 0",
                f"v_mbcnt_hi_u32_b32 v{VT0}, -1, v{VT0}",
                f"v_and_b32 v{VT1}, 31, v{VT0}",
                f"v_mul_u32_u24 v{SW}, {STG_PITCH}, v{VT1}",
                f"v_lshrrev_b32 v{VT1}, 5, v{VT0}",
                f"v_lshl_add_u32 v{SW}, v{VT1}, 3, v{SW}",
                f"v_add_u32 v{SW}, s{S_STG}, v{SW}",
                f"v_lshrrev_b32 v{VT1}, 3, v{VT0}",
                f"v_mul_u32_u24 v{SR}, {STG_PITCH}, v{VT1}",
                f"v_and_b32 v{VT0}, 7, v{VT0}",
                f"v_lshl_add_u32 v{SR}, v{VT0}, 4, v{SR}",
                f"v_add_u32 v{SR}, s{S_STG}, v{SR}",
                f"v_mul_u32_u24 v{SO}, 384, v{VT1}",
                f"v_lshl_add_u32 v{SO}, v{VT0}, 4, v{SO}",
                f"s_mul_i32 s{S_SO}, s{S_W}, {32*384}",
                ]

    def ep_block(h, b):
        R = OREG(2 * b)
        ops = []
        for i in range(16):
            ops.append(("v", f"v_pk_mul_f32 v[{R+2*i}:{R+2*i+1}], v[{R+2*i}:{R+2*i+1}], v[{INV}:{INV+1}] op_sel_hi:[1,0]"))
        for dd in range(2):
            for gq in range(4):
                B = R + 16 * dd + 4 * gq
                ops.append(("v", f"v_cvt_pk_bf16_f32 v{B}, v{B}, v{B+1}"))
                ops.append(("v", f"v_cvt_pk_bf16_f32 v{B+1}, v{B+2}, v{B+3}"))
        for dd in range(2):
            for gq in range(4):
                B = R + 16 * dd + 4 * gq
                ops.append(("dsw", f"ds_write_b64 v{SW}, v[{B}:{B+1}] offset:{(4*dd+gq)*16}", ("ow", h, b)))
        for i in range(4):
            D = R + 4 * i
            ops.append(("dsr", f"ds_read_b128 v[{D}:{D+3}], v{SR} offset:{i*8*STG_PITCH}", ("or", h, b, i)))
        for i in range(4):
            D = R + 4 * i
            ops.append(("wl", ("or", h, b, i)))
            ops.append(("s", f"s_add_u32 s{S_TOFF+7}, s{S_TOFF+8}, {3072*i}"))
            ops.append(("st", f"buffer_store_dwordx4 v[{D}:{D+3}], v{SO}, s[{SRD_O}:{SRD_O+3}], s{S_TOFF+7} offen offset:{128*b}{fl['O']}", ("O", h)))
        return ops

    def emit_op(op):
        if isinstance(op, str):
            e(op); return
        k = op[0]
        if k in ("v", "s"):
            e(op[1])
        elif k in ("dsw", "dsr"):
            e(op[1]); g.lg_issue(op[2])
        elif k == "wl":
            e(f"s_waitcnt lgkmcnt({g.lg_wait(op[1])})")
        elif k == "st":
            e(op[1]); g.vm_issue(op[2])
        else:
            raise ValueError(op)

    def spread(ops, items, lo, hi):
        n = hi - lo
        for k, op in enumerate(ops):
            items[lo + (k * n) // len(ops)]["post"].append(op)

    def head(h):
        n0 = 12 * h
        for j in range(4):
            n = n0 + j
            if not (h > 0 and j == 0):
                sync(n)
            q_read(n)
        items = []
        for t in range(4):
            n = n0 + 4 + t
            for u in range(2):
                for s in range(12):
                    T = 2 * t + u
                    d = 16 * T
                    items.append(dict(tile=n, kind="K",
                        reads=[f"ds_read_b128 v[{{fr}}:{{fr3}}], v{AB + (s & 3)} offset:{(s >> 2)*8192 + u*4096}"],
                        mfma=f"v_mfma_f32_32x32x16_bf16 v[{d}:{d+15}], v[{{fr}}:{{fr3}}], v[{QREG(s)}:{QREG(s)+3}], " + ("0" if s == 0 else f"v[{d}:{d+15}]"),
                        pre=[], post=[]))
        for t in range(4):
            n = n0 + 8 + t
            if t < 3:
                order = [(ks, dt) for ks in range(4) for dt in range(6)]
            else:
                order = [(ks, dt) for ks in range(2) for dt in range(6)] + [(ks, dt) for dt in range(6) for ks in (2, 3)]
            for ks, dt in order:
                d = OREG(dt)
                gks = 4 * t + ks
                pk = 16 * (gks >> 1) + 4 * (gks & 1)
                first = (t == 0 and ks == 0)
                items.append(dict(tile=n, kind="V",
                    reads=[f"ds_read_b64_tr_b16 v[{{fr}}:{{fr1}}], v{AB + 2*(dt & 1)} offset:{(dt >> 1)*8192 + ks*2048}",
                           f"ds_read_b64_tr_b16 v[{{fr2}}:{{fr3}}], v{AB + 2*(dt & 1) + 1} offset:{(dt >> 1)*8192 + ks*2048 + 1024}"],
                    mfma=f"v_mfma_f32_32x32x16_bf16 v[{d}:{d+15}], v[{{fr}}:{{fr3}}], v[{pk}:{pk+3}], " + ("0" if first else f"v[{d}:{d+15}]"),
                    pre=[], post=[]))
        for T in range(7):
            spread(max_tile(T), items, 12 * (T + 1) + 4, 12 * (T + 1) + 12)
        items[96]["pre"] += sm_head()
        for T in range(1, 8):
            spread(exp_tile(T), items, 96 + 12 * (T - 1), 96 + 12 * T)
        V3b = 96 + 72 + 12
        items[V3b]["post"] += inv_l() + ep_addr() + [f"s_add_u32 s{S_TOFF+8}, s{S_HEAD[h]}, s{S_SO}"]
        tail = []
        if opt.ep_inter:
            ops0 = ep_block(h, 0)
            spread(ops0, items, V3b + 3 + 4, V3b + 12)
            tail = [("v", "s_nop 1")] + ep_block(h, 1) + [("v", "s_nop 3")] + ep_block(h, 2)
        else:
            tail = [("v", "s_nop 7"), ("v", "s_nop 3")] + ep_block(h, 0) + ep_block(h, 1) + ep_block(h, 2)
        def fmt(s, i):
            fr = FR + 4 * (i % NF)
            return s.format(fr=fr, fr1=fr + 1, fr2=fr + 2, fr3=fr + 3)
        def issue_reads(j):
            it = items[j]
            if j == 0 or items[j - 1]["tile"] != it["tile"]:
                sync(it["tile"])
                set_ab(it["tile"])
            for r in it["reads"]:
                e(fmt(r, j)); g.lg_issue(("f", h, j))
        for j in range(NF - 1):
            issue_reads(j)
        for i, it in enumerate(items):
            for op in it["pre"]:
                emit_op(op)
            e(f"s_waitcnt lgkmcnt({g.lg_wait(('f', h, i))})")
            e(fmt(it["mfma"], i))
            j = i + NF - 1
            if j < len(items):
                issue_reads(j)
            elif j == len(items) and h == 0:
                sync(n0 + 12)
            for op in it["post"]:
                emit_op(op)
        stamp(f"mfma_done{h}")
        for op in tail:
            emit_op(op)
        stamp(f"ep_done{h}")

    head(0)
    head(1)
    if opt.stamp:
        e("s_waitcnt vmcnt(0)")
        stamp("end")
        e("s_memtime s[46:47]")
        e("s_waitcnt lgkmcnt(0)")
        e("s_mov_b32 s42, 0x10000000")
        e("s_mov_b32 s43, 0x00020000")
        e("s_lshl_b32 s33, s2, 3")
        e(f"s_add_u32 s33, s33, s{S_W}")
        e("s_lshl_b32 s33, s33, 8")
        e("v_mov_b32 v1, 0")
        for i in range(len(stamps)):
            e(f"v_mov_b32 v0, s{48+2*i}")
            e(f"buffer_store_dword v0, v1, s[40:43], s33 offen offset:{4*i}")
        e("s_sub_u32 s46, s46, s44")
        e("v_mov_b32 v0, s46")
        e(f"buffer_store_dword v0, v1, s[40:43], s33 offen offset:{4*len(stamps)}")
        print("nstamps", len(stamps), "stamps:", " ".join(stamps), file=sys.stderr)
        assert 48 + 2 * len(stamps) <= 102
    g.label("L_end")
    e("s_endpgm")

    out = HEADER
    out += f"; @launch grid=(256,1,1) block=(512,1,1) lds={LDS_BYTES}\n"
    out += '.amdgcn_target "amdgcn-amd-amdhsa--gfx950"\n.text\n'
    out += f".globl {NAME}\n.p2align 8\n.type {NAME},@function\n{NAME}:\n"
    out += "\n".join(g.L) + "\n"
    out += f""".section .rodata,"a"
.p2align 6
.amdhsa_kernel {NAME}
  .amdhsa_next_free_vgpr 256
  .amdhsa_next_free_sgpr {102 if opt.stamp else 48}
  .amdhsa_accum_offset 256
  .amdhsa_group_segment_fixed_size 0
  .amdhsa_kernarg_size 48
  .amdhsa_user_sgpr_count 2
  .amdhsa_user_sgpr_kernarg_segment_ptr 1
  .amdhsa_system_sgpr_workgroup_id_x 1
.end_amdhsa_kernel
"""
    return out

if __name__ == "__main__":
    ap = argparse.ArgumentParser()
    ap.add_argument("-o", default="standalone__mha_softmax__near_ridge.s")
    ap.add_argument("--nslot", type=int, default=5)
    ap.add_argument("--nf", type=int, default=5)
    ap.add_argument("--fl_q", default="")
    ap.add_argument("--fl_k", default="")
    ap.add_argument("--fl_v", default="")
    ap.add_argument("--fl_o", default="")
    ap.add_argument("--headmap", type=int, default=0)
    ap.add_argument("--stamp", type=int, default=0)
    ap.add_argument("--nopk", type=int, default=0)
    ap.add_argument("--ep_inter", type=int, default=0)
    opt = ap.parse_args()
    open(opt.o, "w").write(build(opt))
```

```python
import sys, math, struct, argparse

HEADER = """; Kernarg layout for this problem (48 bytes, ptrs only, base s[0:1]):
;   offset   0: d_in[0] q  shape=(16, 32, 256, 192) dtype=bfloat16 strides=(3145728, 98304, 384, 2) contiguous=True
;   offset   8: d_in[1] k  shape=(16, 32, 256, 192) dtype=bfloat16 strides=(3145728, 98304, 384, 2) contiguous=True
;   offset  16: d_in[2] v  shape=(16, 32, 256, 192) dtype=bfloat16 strides=(3145728, 98304, 384, 2) contiguous=True
"""
NAME = "standalone__mha_softmax__near_ridge_kernel"
HEAD_BYTES = 256 * 384
TILE_BYTES = 64 * 384
TOTAL_BYTES = 512 * HEAD_BYTES
STG_PITCH = 144
STG_WAVE = 32 * STG_PITCH

def f32bits(x):
    return struct.unpack("<I", struct.pack("<f", x))[0]

OB = 128
def OREG(dt): return OB + 16 * dt
def QREG(s): return OB + 4 * s
FR = 224
VD = 244
AB = 245
KB0 = 249
MC = 250
VB0 = 251
VL = 252
VT0, VT1 = 254, 255
SW, SR, SO, INV = 0, 1, 2, 4
SRD_Q, SRD_K, SRD_V, SRD_O = 12, 16, 20, 24
S_W1024 = 28
S_HEAD = [29, 30]
S_TOFF = 31
S_C = 32
S_WH = 34
S_U = 35
S_STG = 36
S_SO = 37
S_W = 3

class Gen:
    def __init__(self, opt):
        self.o = opt
        self.L = []
        self.vm = []
        self.lg = []
    def e(self, s):
        self.L.append("    " + s)
    def c(self, s):
        self.L.append("    ; " + s)
    def label(self, s):
        self.L.append(s + ":")
    def vm_issue(self, tag):
        self.vm.append(tag)
    def vm_wait(self, tags):
        last = -1
        for i, t in enumerate(self.vm):
            if t in tags:
                last = i
        assert last >= 0, tags
        return min(63, len(self.vm) - 1 - last)
    def lg_issue(self, tag):
        self.lg.append(tag)
    def lg_wait(self, tag):
        last = -1
        for i, t in enumerate(self.lg):
            if t == tag:
                last = i
        assert last >= 0, tag
        return min(15, len(self.lg) - 1 - last)

def build(opt):
    g = Gen(opt)
    e = g.e
    NS = opt.nslot
    NF = opt.nf
    assert FR + 4 * NF <= VD
    STG0 = NS * TILE_BYTES
    LDS_BYTES = STG0 + 8 * STG_WAVE
    assert LDS_BYTES <= 163840
    fl = {"Q": opt.fl_q, "K": opt.fl_k, "V": opt.fl_v, "O": opt.fl_o}
    fl = {k: ((" " + v.replace("+", " ")) if v else "") for k, v in fl.items()}
    stamps = []
    def stamp(name):
        if not opt.stamp:
            return
        i = len(stamps)
        stamps.append(name)
        e(f"{'s_memtime' if opt.stamp == 2 else 's_memrealtime'} s[{48+2*i}:{49+2*i}]")

    e("s_cmp_ge_u32 s2, 256")
    e("s_cbranch_scc1 L_end")
    if opt.stamp:
        e("s_memtime s[44:45]")
        e("s_load_dwordx2 s[40:41], s[0:1], 40")
    stamp("start")
    if opt.dbgtime or opt.padto:
        e("s_memtime s[44:45]")
        e("s_memrealtime s[48:49]")
    e("s_load_dwordx4 s[4:7], s[0:1], 0")
    e("s_load_dwordx4 s[8:11], s[0:1], 16")
    e("v_lshrrev_b32 v1, 6, v0")
    e("v_and_b32 v2, 63, v0")
    e(f"v_readfirstlane_b32 s{S_W}, v1")
    e("v_and_b32 v3, 31, v2")
    e("v_lshrrev_b32 v4, 5, v2")
    e("v_lshrrev_b32 v5, 3, v2")
    e("v_lshl_add_u32 v5, v1, 3, v5")
    e("v_bfe_u32 v6, v2, 4, 1")
    e("v_lshlrev_b32 v6, 2, v6")
    e("v_lshl_or_b32 v6, v4, 1, v6")
    e("v_and_b32 v7, 1, v1")
    e("v_or_b32 v6, v6, v7")
    e("v_and_b32 v7, 7, v2")
    e("v_xor_b32 v6, v6, v7")
    e("v_mul_u32_u24 v5, 384, v5")
    e(f"v_lshl_add_u32 v{VD}, v6, 4, v5")
    e(f"s_lshl_b32 s{S_W1024}, s{S_W}, 10")
    if opt.headmap == 0:
        e(f"s_mul_i32 s{S_HEAD[0]}, s2, {HEAD_BYTES}")
        e(f"s_add_u32 s{S_HEAD[1]}, s{S_HEAD[0]}, {256*HEAD_BYTES}")
    else:
        e(f"s_mul_i32 s{S_HEAD[0]}, s2, {2*HEAD_BYTES}")
        e(f"s_add_u32 s{S_HEAD[1]}, s{S_HEAD[0]}, {HEAD_BYTES}")
    e("s_waitcnt lgkmcnt(0)")
    for srd, sp in ((SRD_Q, 4), (SRD_K, 6), (SRD_V, 8), (SRD_O, 10)):
        e(f"s_mov_b32 s{srd}, s{sp}")
        e(f"s_mov_b32 s{srd+1}, s{sp+1}")
        e(f"s_mov_b32 s{srd+2}, {TOTAL_BYTES}")
        e(f"s_mov_b32 s{srd+3}, 0x00020000")

    NT = 24
    def tile_kind(n):
        return "QKV"[(n % 12) // 4]
    def issue_tile(n):
        if n >= NT:
            return
        h = n // 12
        kind = tile_kind(n)
        t = n % 4
        slot = n % NS
        srd = {"Q": SRD_Q, "K": SRD_K, "V": SRD_V}[kind]
        e(f"s_add_u32 s{S_TOFF}, s{S_HEAD[h]}, {t*TILE_BYTES}")
        for b in range(3):
            e(f"s_add_u32 m0, s{S_W1024}, {slot*TILE_BYTES + b*8064}")
            e("s_nop 0")
            e(f"buffer_load_dwordx4 v{VD}, s[{srd}:{srd+3}], s{S_TOFF} offen offset:{128*b}{fl[kind]} lds")
            g.vm_issue(("T", n))
    def sync(n):
        g.c(f"---- sync tile {n} ({tile_kind(n)}{n%4})")
        e(f"s_waitcnt vmcnt({g.vm_wait([('T', n)])})")
        e("s_barrier")
        if n % 12 in (0, 3, 4, 5, 7, 8, 9, 11):
            stamp(f"t{n}")
        issue_tile(n - 2 + NS)

    for n in range(NS - 2):
        issue_tile(n)

    e("v_bfe_u32 v5, v3, 1, 1")
    e("v_lshlrev_b32 v5, 2, v5")
    e("v_bfe_u32 v6, v3, 2, 1")
    e("v_lshl_or_b32 v5, v6, 1, v5")
    e("v_bfe_u32 v6, v3, 3, 1")
    e("v_or_b32 v5, v5, v6")
    e("v_xor_b32 v5, v5, v4")
    e("v_lshlrev_b32 v5, 4, v5")
    e(f"v_lshl_add_u32 v{KB0}, v3, 7, v5")
    e("v_bfe_u32 v5, v2, 2, 2")
    e("v_lshl_add_u32 v6, v4, 2, v5")
    e("v_lshlrev_b32 v6, 7, v6")
    e("v_bfe_u32 v7, v2, 4, 1")
    e("v_lshlrev_b32 v7, 1, v7")
    e("v_bfe_u32 v8, v2, 1, 1")
    e("v_or_b32 v7, v7, v8")
    e("v_bfe_u32 v8, v2, 3, 1")
    e("v_lshlrev_b32 v8, 2, v8")
    e("v_lshl_or_b32 v8, v4, 1, v8")
    e("v_xor_b32 v7, v7, v8")
    e("v_lshl_add_u32 v6, v7, 4, v6")
    e("v_and_b32 v7, 1, v2")
    e(f"v_lshl_add_u32 v{VB0}, v7, 3, v6")
    c = (192 ** -0.5) * math.log2(math.e)
    e(f"s_mov_b32 s{S_C}, 0x{f32bits(c):08x}")
    e(f"s_mov_b32 s{S_C+1}, 0x{f32bits(c):08x}")
    e(f"s_lshr_b32 s{S_WH}, s{S_W}, 1")
    e(f"s_and_b32 s{S_U}, s{S_W}, 1")
    e(f"s_lshl_b32 s{S_U}, s{S_U}, 12")
    e(f"s_mul_i32 s{S_STG}, s{S_W}, {STG_WAVE}")
    e(f"s_add_u32 s{S_STG}, s{S_STG}, {STG0}")
    stamp("issued")

    def set_ab(n):
        kind = tile_kind(n)
        base = (n % NS) * TILE_BYTES
        if kind == "V":
            e(f"v_add_u32 v{AB}, {base}, v{VB0}")
            e(f"v_xor_b32 v{AB+1}, 16, v{AB}")
            e(f"v_xor_b32 v{AB+2}, 64, v{AB}")
            e(f"v_xor_b32 v{AB+3}, 0x50, v{AB}")
        else:
            e(f"v_add_u32 v{AB}, {base}, v{KB0}")
            if kind == "Q":
                e(f"v_add_u32 v{AB}, s{S_U}, v{AB}")
            for j in range(1, 4):
                e(f"v_xor_b32 v{AB+j}, {32*j}, v{AB}")

    lblc = [0]
    def q_read(n):
        j = n % 4
        lblc[0] += 1
        lab = f"L_q{lblc[0]}"
        e(f"s_cmp_eq_u32 s{S_WH}, {j}")
        e(f"s_cbranch_scc0 {lab}")
        set_ab(n)
        for s in range(12):
            e(f"ds_read_b128 v[{QREG(s)}:{QREG(s)+3}], v{AB + (s & 3)} offset:{(s >> 2)*8192}")
        e("s_waitcnt lgkmcnt(0)")
        g.label(lab)

    def exp_tile(T):
        b = 16 * T
        F = lambda i: f"v_pk_fma_f32 v[{b+2*i}:{b+2*i+1}], v[{b+2*i}:{b+2*i+1}], s[{S_C}:{S_C+1}], v[{MC}:{MC+1}] op_sel_hi:[1,1,0] neg_lo:[0,0,1] neg_hi:[0,0,1]"
        E = lambda i: f"v_exp_f32 v{b+i}, v{b+i}"
        if T == 0:
            A = lambda i: (f"v_pk_add_f32 v[{VL}:{VL+1}], v[{VL}:{VL+1}], v[{b+2*i}:{b+2*i+1}]" if i > 0 else
                           None)
        else:
            A = lambda i: f"v_pk_add_f32 v[{VL}:{VL+1}], v[{VL}:{VL+1}], v[{b+2*i}:{b+2*i+1}]"
        C = lambda i: f"v_cvt_pk_bf16_f32 v{b+i}, v{b+2*i}, v{b+2*i+1}"
        if opt.nopk:
            L = []
            for i in range(16):
                L.append(f"v_fma_f32 v{b+i}, v{b+i}, s{S_C}, -v{MC}")
            X = []
            for i in range(8):
                X += [L[2*i], L[2*i+1]]
            out = []
            out += [L[0], L[1], L[2], L[3]]
            for i in range(8):
                out += [E(2*i), E(2*i+1)]
                if i + 2 < 8:
                    out += [L[2*i+4], L[2*i+5]]
                if i >= 1:
                    k = i - 1
                    for r in (2*k, 2*k+1):
                        if T == 0 and k == 0:
                            out.append(f"v_mov_b32 v{VL + (r & 1)}, v{b+r}")
                        else:
                            out.append(f"v_add_f32 v{VL + (r & 1)}, v{VL + (r & 1)}, v{b+r}")
                    out.append(C(k))
            for r in (14, 15):
                out.append(f"v_add_f32 v{VL + (r & 1)}, v{VL + (r & 1)}, v{b+r}")
            out.append(C(7))
            return out
        out = [F(0), F(1)]
        for i in range(8):
            out += [E(2*i), E(2*i+1)]
            if i + 2 < 8:
                out.append(F(i + 2))
            if i >= 1:
                k = i - 1
                if T == 0 and k == 0:
                    out.append(f"v_mov_b32 v{VL}, v{b}")
                    out.append(f"v_mov_b32 v{VL+1}, v{b+1}")
                else:
                    out.append(A(k))
                out.append(C(k))
        out.append("s_nop 0")
        out.append(A(7))
        out.append(C(7))
        return out

    def max_tile(T):
        b = 16 * T
        out = []
        if T == 0:
            out.append(f"v_max3_f32 v{MC}, v{b}, v{b+1}, v{b+2}")
            for k in range(6):
                out.append(f"v_max3_f32 v{MC}, v{MC}, v{b+3+2*k}, v{b+4+2*k}")
            out.append(f"v_max_f32 v{MC}, v{MC}, v{b+15}")
        else:
            for k in range(8):
                out.append(f"v_max3_f32 v{MC}, v{MC}, v{b+2*k}, v{b+2*k+1}")
        return out

    def sm_head():
        out = ["s_nop 7", "s_nop 3"]
        out += max_tile(7)
        out += [f"v_mov_b32 v{VT0}, v{MC}", "s_nop 1",
                f"v_permlane32_swap_b32 v{MC}, v{VT0}", "s_nop 1",
                f"v_max_f32 v{MC}, v{MC}, v{VT0}",
                f"v_mul_f32 v{MC}, s{S_C}, v{MC}"]
        out += exp_tile(0)
        out += ["s_nop 1"]
        return out

    def inv_l():
        return [f"v_add_f32 v{VL}, v{VL}, v{VL+1}",
                f"v_mov_b32 v{VT0}, v{VL}", "s_nop 1",
                f"v_permlane32_swap_b32 v{VL}, v{VT0}", "s_nop 1",
                f"v_add_f32 v{VL}, v{VL}, v{VT0}",
                f"v_rcp_f32 v{INV}, v{VL}"]

    def ep_addr():
        return [f"v_mbcnt_lo_u32_b32 v{VT0}, -1, 0",
                f"v_mbcnt_hi_u32_b32 v{VT0}, -1, v{VT0}",
                f"v_and_b32 v{VT1}, 31, v{VT0}",
                f"v_mul_u32_u24 v{SW}, {STG_PITCH}, v{VT1}",
                f"v_lshrrev_b32 v{VT1}, 5, v{VT0}",
                f"v_lshl_add_u32 v{SW}, v{VT1}, 3, v{SW}",
                f"v_add_u32 v{SW}, s{S_STG}, v{SW}",
                f"v_lshrrev_b32 v{VT1}, 3, v{VT0}",
                f"v_mul_u32_u24 v{SR}, {STG_PITCH}, v{VT1}",
                f"v_and_b32 v{VT0}, 7, v{VT0}",
                f"v_lshl_add_u32 v{SR}, v{VT0}, 4, v{SR}",
                f"v_add_u32 v{SR}, s{S_STG}, v{SR}",
                f"v_mul_u32_u24 v{SO}, 384, v{VT1}",
                f"v_lshl_add_u32 v{SO}, v{VT0}, 4, v{SO}",
                f"s_mul_i32 s{S_SO}, s{S_W}, {32*384}",
                ]

    def ep_block(h, b):
        R = OREG(2 * b)
        ops = []
        for i in range(16):
            ops.append(("v", f"v_pk_mul_f32 v[{R+2*i}:{R+2*i+1}], v[{R+2*i}:{R+2*i+1}], v[{INV}:{INV+1}] op_sel_hi:[1,0]"))
        for dd in range(2):
            for gq in range(4):
                B = R + 16 * dd + 4 * gq
                ops.append(("v", f"v_cvt_pk_bf16_f32 v{B}, v{B}, v{B+1}"))
                ops.append(("v", f"v_cvt_pk_bf16_f32 v{B+1}, v{B+2}, v{B+3}"))
        for dd in range(2):
            for gq in range(4):
                B = R + 16 * dd + 4 * gq
                ops.append(("dsw", f"ds_write_b64 v{SW}, v[{B}:{B+1}] offset:{(4*dd+gq)*16}", ("ow", h, b)))
        for i in range(4):
            D = R + 4 * i
            ops.append(("dsr", f"ds_read_b128 v[{D}:{D+3}], v{SR} offset:{i*8*STG_PITCH}", ("or", h, b, i)))
        for i in range(4):
            D = R + 4 * i
            ops.append(("wl", ("or", h, b, i)))
            ops.append(("s", f"s_add_u32 s{S_TOFF+7}, s{S_TOFF+8}, {3072*i}"))
            ops.append(("st", f"buffer_store_dwordx4 v[{D}:{D+3}], v{SO}, s[{SRD_O}:{SRD_O+3}], s{S_TOFF+7} offen offset:{128*b}{fl['O']}", ("O", h)))
        return ops

    def emit_op(op):
        if isinstance(op, str):
            e(op); return
        k = op[0]
        if k in ("v", "s"):
            e(op[1])
        elif k in ("dsw", "dsr"):
            e(op[1]); g.lg_issue(op[2])
        elif k == "wl":
            e(f"s_waitcnt lgkmcnt({g.lg_wait(op[1])})")
        elif k == "st":
            e(op[1]); g.vm_issue(op[2])
        else:
            raise ValueError(op)

    def spread(ops, items, lo, hi):
        n = hi - lo
        for k, op in enumerate(ops):
            items[lo + (k * n) // len(ops)]["post"].append(op)

    def head(h):
        n0 = 12 * h
        for j in range(4):
            n = n0 + j
            if not (h > 0 and j == 0):
                sync(n)
            q_read(n)
        items = []
        for t in range(4):
            n = n0 + 4 + t
            for u in range(2):
                for s in range(12):
                    T = 2 * t + u
                    d = 16 * T
                    items.append(dict(tile=n, kind="K",
                        reads=[f"ds_read_b128 v[{{fr}}:{{fr3}}], v{AB + (s & 3)} offset:{(s >> 2)*8192 + u*4096}"],
                        mfma=f"v_mfma_f32_32x32x16_bf16 v[{d}:{d+15}], v[{{fr}}:{{fr3}}], v[{QREG(s)}:{QREG(s)+3}], " + ("0" if s == 0 else f"v[{d}:{d+15}]"),
                        pre=[], post=[]))
        for t in range(4):
            n = n0 + 8 + t
            if t < 3:
                order = [(ks, dt) for ks in range(4) for dt in range(6)]
            else:
                order = [(ks, dt) for ks in range(2) for dt in range(6)] + [(ks, dt) for dt in range(6) for ks in (2, 3)]
            for ks, dt in order:
                d = OREG(dt)
                gks = 4 * t + ks
                pk = 16 * (gks >> 1) + 4 * (gks & 1)
                first = (t == 0 and ks == 0)
                items.append(dict(tile=n, kind="V",
                    reads=[f"ds_read_b64_tr_b16 v[{{fr}}:{{fr1}}], v{AB + 2*(dt & 1)} offset:{(dt >> 1)*8192 + ks*2048}",
                           f"ds_read_b64_tr_b16 v[{{fr2}}:{{fr3}}], v{AB + 2*(dt & 1) + 1} offset:{(dt >> 1)*8192 + ks*2048 + 1024}"],
                    mfma=f"v_mfma_f32_32x32x16_bf16 v[{d}:{d+15}], v[{{fr}}:{{fr3}}], v[{pk}:{pk+3}], " + ("0" if first else f"v[{d}:{d+15}]"),
                    pre=[], post=[]))
        for T in range(7):
            spread(max_tile(T), items, 12 * (T + 1) + 4, 12 * (T + 1) + 12)
        items[96]["pre"] += sm_head()
        for T in range(1, 8):
            spread(exp_tile(T), items, 96 + 12 * (T - 1), 96 + 12 * T)
        V3b = 96 + 72 + 12
        items[V3b]["post"] += inv_l() + ep_addr() + [f"s_add_u32 s{S_TOFF+8}, s{S_HEAD[h]}, s{S_SO}"]
        tail = []
        if opt.ep_inter:
            ops0 = ep_block(h, 0)
            spread(ops0, items, V3b + 3 + 4, V3b + 12)
            tail = [("v", "s_nop 1")] + ep_block(h, 1) + [("v", "s_nop 3")] + ep_block(h, 2)
        else:
            tail = [("v", "s_nop 7"), ("v", "s_nop 3")] + ep_block(h, 0) + ep_block(h, 1) + ep_block(h, 2)
        def fmt(s, i):
            fr = FR + 4 * (i % NF)
            return s.format(fr=fr, fr1=fr + 1, fr2=fr + 2, fr3=fr + 3)
        def issue_reads(j):
            it = items[j]
            if j == 0 or items[j - 1]["tile"] != it["tile"]:
                sync(it["tile"])
                set_ab(it["tile"])
            for r in it["reads"]:
                e(fmt(r, j)); g.lg_issue(("f", h, j))
        for j in range(NF - 1):
            issue_reads(j)
        for i, it in enumerate(items):
            for op in it["pre"]:
                emit_op(op)
            e(f"s_waitcnt lgkmcnt({g.lg_wait(('f', h, i))})")
            e(fmt(it["mfma"], i))
            j = i + NF - 1
            if j < len(items):
                issue_reads(j)
            elif j == len(items) and h == 0:
                sync(n0 + 12)
            for op in it["post"]:
                emit_op(op)
        stamp(f"mfma_done{h}")
        for op in tail:
            emit_op(op)
        stamp(f"ep_done{h}")

    head(0)
    head(1)
    if opt.padto:
        e("s_waitcnt vmcnt(0)")
        g.label("L_spin")
        e("s_sleep 2")
        e("s_memrealtime s[50:51]")
        e("s_waitcnt lgkmcnt(0)")
        e("s_sub_u32 s52, s50, s48")
        e(f"s_cmp_lt_u32 s52, {opt.padto}")
        e("s_cbranch_scc1 L_spin")
    if opt.dbgtime:
        e("s_waitcnt vmcnt(0)")
        e("s_memrealtime s[50:51]")
        e("s_memtime s[46:47]")
        e("s_load_dwordx2 s[40:41], s[0:1], 32")
        e("s_waitcnt lgkmcnt(0)")
        e("s_mov_b32 s42, 256")
        e("s_mov_b32 s43, 0x00020000")
        e("v_mov_b32 v1, 0")
        e("s_mov_b64 exec, 1")
        e("v_mov_b32 v0, s50")
        e("buffer_atomic_umax v0, v1, s[40:43], 0 offen")
        e("s_sub_u32 s52, -1, s48")
        e("v_mov_b32 v2, s52")
        e("buffer_atomic_umax v2, v1, s[40:43], 0 offen offset:4")
        e("s_sub_u32 s46, s46, s44")
        e("v_mov_b32 v3, s46")
        e("buffer_atomic_umax v3, v1, s[40:43], 0 offen offset:8")
        e("s_sub_u32 s50, s50, s48")
        e("v_mov_b32 v4, s50")
        e("buffer_atomic_umax v4, v1, s[40:43], 0 offen offset:12")
    if opt.stamp:
        e("s_waitcnt vmcnt(0)")
        stamp("end")
        e("s_memtime s[46:47]")
        e("s_waitcnt lgkmcnt(0)")
        e("s_mov_b32 s42, 0x10000000")
        e("s_mov_b32 s43, 0x00020000")
        e("s_lshl_b32 s33, s2, 3")
        e(f"s_add_u32 s33, s33, s{S_W}")
        e("s_lshl_b32 s33, s33, 8")
        e("v_mov_b32 v1, 0")
        for i in range(len(stamps)):
            e(f"v_mov_b32 v0, s{48+2*i}")
            e(f"buffer_store_dword v0, v1, s[40:43], s33 offen offset:{4*i}")
        e("s_sub_u32 s46, s46, s44")
        e("v_mov_b32 v0, s46")
        e(f"buffer_store_dword v0, v1, s[40:43], s33 offen offset:{4*len(stamps)}")
        print("nstamps", len(stamps), "stamps:", " ".join(stamps), file=sys.stderr)
        assert 48 + 2 * len(stamps) <= 102
    g.label("L_end")
    e("s_endpgm")

    out = HEADER
    out += f"; @launch grid=(256,1,1) block=(512,1,1) lds={LDS_BYTES}\n"
    out += '.amdgcn_target "amdgcn-amd-amdhsa--gfx950"\n.text\n'
    out += f".globl {NAME}\n.p2align 8\n.type {NAME},@function\n{NAME}:\n"
    out += "\n".join(g.L) + "\n"
    out += f""".section .rodata,"a"
.p2align 6
.amdhsa_kernel {NAME}
  .amdhsa_next_free_vgpr 256
  .amdhsa_next_free_sgpr {102 if (opt.stamp or opt.dbgtime or opt.padto) else 48}
  .amdhsa_accum_offset 256
  .amdhsa_group_segment_fixed_size 0
  .amdhsa_kernarg_size 48
  .amdhsa_user_sgpr_count 2
  .amdhsa_user_sgpr_kernarg_segment_ptr 1
  .amdhsa_system_sgpr_workgroup_id_x 1
.end_amdhsa_kernel
"""
    return out

if __name__ == "__main__":
    ap = argparse.ArgumentParser()
    ap.add_argument("-o", default="standalone__mha_softmax__near_ridge.s")
    ap.add_argument("--nslot", type=int, default=5)
    ap.add_argument("--nf", type=int, default=5)
    ap.add_argument("--fl_q", default="")
    ap.add_argument("--fl_k", default="")
    ap.add_argument("--fl_v", default="")
    ap.add_argument("--fl_o", default="")
    ap.add_argument("--headmap", type=int, default=0)
    ap.add_argument("--stamp", type=int, default=0)
    ap.add_argument("--dbgtime", type=int, default=0)
    ap.add_argument("--padto", type=int, default=0)
    ap.add_argument("--nopk", type=int, default=0)
    ap.add_argument("--ep_inter", type=int, default=0)
    opt = ap.parse_args()
    open(opt.o, "w").write(build(opt))
```

```python
import sys, math, struct, argparse

HEADER = """; Kernarg layout for this problem (48 bytes, ptrs only, base s[0:1]):
;   offset   0: d_in[0] q  shape=(16, 32, 256, 192) dtype=bfloat16 strides=(3145728, 98304, 384, 2) contiguous=True
;   offset   8: d_in[1] k  shape=(16, 32, 256, 192) dtype=bfloat16 strides=(3145728, 98304, 384, 2) contiguous=True
;   offset  16: d_in[2] v  shape=(16, 32, 256, 192) dtype=bfloat16 strides=(3145728, 98304, 384, 2) contiguous=True
"""
NAME = "standalone__mha_softmax__near_ridge_kernel"
HEAD_BYTES = 256 * 384
TILE_BYTES = 64 * 384
TOTAL_BYTES = 512 * HEAD_BYTES
STG_PITCH = 144
STG_WAVE = 32 * STG_PITCH

def f32bits(x):
    return struct.unpack("<I", struct.pack("<f", x))[0]

FR = 224
VD = 244
AB = 245
KB0 = 249
NF_ = 250
VB0 = 251
VL = 252
VT0, VT1 = 254, 255
SRD_Q, SRD_K, SRD_V, SRD_O = 12, 16, 20, 24
S_W1024 = 28
S_HEAD = [29, 30]
S_TOFF = 31
S_NC = 32
S_WH = 34
S_U = 35
S_STG = 36
S_SO = 37
S_ST = 38
S_OB = [39, 33]
S_W = 3

class RM:
    def __init__(self, S, Q, O, MT):
        self.S = [16 * b for b in S]
        self.Q = [16 * b for b in Q]
        self.O = [16 * b for b in O]
        self.MT = 16 * MT
        s0 = self.S[0]
        self.F = {1: s0 + 4, 2: s0 + 5, 3: s0 + 6, 4: s0 + 7, 5: VT1}
        self.QA = s0
        self.SW, self.SR, self.SO, self.INV = s0 + 8, s0 + 9, s0 + 10, s0 + 11
    def q(self, s):
        return self.Q[s // 4] + 4 * (s % 4)
    def half(self, H):
        return self.S[H >> 1] + 8 * (H & 1)
RMS = [RM([0,1,2,3,4,5,6,7], [8,9,10], [8,9,10,11,12,13], 13),
       RM([4,5,6,7,0,8,9,10], [1,2,3], [1,2,3,11,12,13], 13)]

class Gen:
    def __init__(self):
        self.L = []; self.vm = []; self.lg = []
    def e(self, s): self.L.append("    " + s)
    def c(self, s): self.L.append("    ; " + s)
    def label(self, s): self.L.append(s + ":")
    def vm_issue(self, tag): self.vm.append(tag)
    def vm_wait(self, tags):
        last = -1
        for i, t in enumerate(self.vm):
            if t in tags: last = i
        assert last >= 0, tags
        return min(63, len(self.vm) - 1 - last)
    def lg_issue(self, tag): self.lg.append(tag)
    def lg_wait(self, tag):
        last = -1
        for i, t in enumerate(self.lg):
            if t == tag: last = i
        assert last >= 0, tag
        return min(15, len(self.lg) - 1 - last)

def build(opt):
    g = Gen(); e = g.e
    NS, NF, LOOK = opt.nslot, opt.nf, opt.look
    assert FR + 4 * NF <= VD
    STG0 = NS * TILE_BYTES
    LDS_BYTES = STG0 + 8 * STG_WAVE
    assert LDS_BYTES <= 163840
    fl = {"Q": opt.fl_q, "K": opt.fl_k, "V": opt.fl_v, "O": opt.fl_o}
    fl = {k: ((" " + v.replace("+", " ")) if v else "") for k, v in fl.items()}
    c = (192 ** -0.5) * math.log2(math.e)
    CLIT = f"0x{f32bits(c):08x}"
    stamps = []
    def stamp(name):
        if not opt.stamp: return
        i = len(stamps); stamps.append(name)
        e(f"{'s_memtime' if opt.stamp == 2 else 's_memrealtime'} s[{48+2*i}:{49+2*i}]")

    tiles = [(0, "Q", j) for j in range(4)] + [(0, "K", j) for j in range(4)] + \
            [(0, "V", 0), (0, "V", 1), (0, "V", 2), (1, "Q", 0), (1, "Q", 1), (0, "V", 3), (1, "Q", 2), (1, "Q", 3)] + \
            [(1, "K", j) for j in range(4)] + [(1, "V", j) for j in range(4)]
    tid = {t: i for i, t in enumerate(tiles)}
    NT = len(tiles)
    st = dict(issued=0, free=list(range(NS)), slot={}, done=[], released=set(), synced=-1)

    e("s_cmp_ge_u32 s2, 256")
    e("s_cbranch_scc1 L_end")
    if opt.stamp:
        e("s_memtime s[44:45]")
        e("s_load_dwordx2 s[40:41], s[0:1], 40")
    stamp("start")
    if opt.padto:
        e("s_memrealtime s[48:49]")
    e("s_load_dwordx4 s[4:7], s[0:1], 0")
    e("s_load_dwordx4 s[8:11], s[0:1], 16")
    e("v_lshrrev_b32 v1, 6, v0")
    e("v_and_b32 v2, 63, v0")
    e(f"v_readfirstlane_b32 s{S_W}, v1")
    e("v_and_b32 v3, 31, v2")
    e("v_lshrrev_b32 v4, 5, v2")
    e("v_lshrrev_b32 v5, 3, v2")
    e("v_lshl_add_u32 v5, v1, 3, v5")
    e("v_bfe_u32 v6, v2, 4, 1")
    e("v_lshlrev_b32 v6, 2, v6")
    e("v_lshl_or_b32 v6, v4, 1, v6")
    e("v_and_b32 v7, 1, v1")
    e("v_or_b32 v6, v6, v7")
    e("v_and_b32 v7, 7, v2")
    e("v_xor_b32 v6, v6, v7")
    e("v_mul_u32_u24 v5, 384, v5")
    e(f"v_lshl_add_u32 v{VD}, v6, 4, v5")
    e(f"s_lshl_b32 s{S_W1024}, s{S_W}, 10")
    if opt.headmap == 0:
        e(f"s_mul_i32 s{S_HEAD[0]}, s2, {HEAD_BYTES}")
        e(f"s_add_u32 s{S_HEAD[1]}, s{S_HEAD[0]}, {256*HEAD_BYTES}")
    else:
        e(f"s_mul_i32 s{S_HEAD[0]}, s2, {2*HEAD_BYTES}")
        e(f"s_add_u32 s{S_HEAD[1]}, s{S_HEAD[0]}, {HEAD_BYTES}")
    e("s_waitcnt lgkmcnt(0)")
    for srd, sp in ((SRD_Q, 4), (SRD_K, 6), (SRD_V, 8), (SRD_O, 10)):
        e(f"s_mov_b32 s{srd}, s{sp}")
        e(f"s_mov_b32 s{srd+1}, s{sp+1}")
        e(f"s_mov_b32 s{srd+2}, {TOTAL_BYTES}")
        e(f"s_mov_b32 s{srd+3}, 0x00020000")

    pend = []
    def emit_dma():
        n, b = pend.pop(0)
        h, kind, t = tiles[n]
        slot = st["slot"][n]
        srd = {"Q": SRD_Q, "K": SRD_K, "V": SRD_V}[kind]
        e(f"s_add_u32 m0, s{S_W1024}, {slot*TILE_BYTES + b*8064}")
        e(f"s_add_u32 s{S_TOFF}, s{S_HEAD[h]}, {t*TILE_BYTES}")
        e(f"buffer_load_dwordx4 v{VD}, s[{srd}:{srd+3}], s{S_TOFF} offen offset:{128*b}{fl[kind]} lds")
        g.vm_issue(("T", n))
    def issue_next(now=True):
        n = st["issued"]
        slot = st["free"].pop(0)
        st["slot"][n] = slot
        st["issued"] += 1
        for b in range(3):
            pend.append((n, b))
        if now:
            while pend: emit_dma()
    def sync(n):
        assert n == st["synced"] + 1, (n, st["synced"])
        assert n < st["issued"], f"tile {n} not issued before its sync"
        st["synced"] = n
        h, kind, t = tiles[n]
        while any(p[0] <= n for p in pend):
            emit_dma()
        g.c(f"---- sync tile {n} ({kind}{t} head {h})")
        e(f"s_waitcnt vmcnt({g.vm_wait([('T', n)])})")
        e("s_barrier")
        if opt.stamp and (h, kind, t) in STAMP_AT:
            stamp(f"{kind}{t}{'AB'[h]}")
        for d in st["done"]:
            if d not in st["released"]:
                st["released"].add(d); st["free"].append(st["slot"][d])
        while st["issued"] < NT and st["free"] and st["issued"] - (n + 1) < LOOK:
            issue_next(now=(opt.dmagap == 0 or not st.get("initems")))
    STAMP_AT = {(0,"Q",0),(0,"K",0),(0,"K",1),(0,"K",3),(0,"V",0),(0,"V",1),(0,"V",2),(0,"V",3),(1,"K",0),(1,"K",1),(1,"K",3),(1,"V",0),(1,"V",1),(1,"V",3)}

    for n in range(opt.pro):
        issue_next()

    e("v_bfe_u32 v5, v3, 1, 1")
    e("v_lshlrev_b32 v5, 2, v5")
    e("v_bfe_u32 v6, v3, 2, 1")
    e("v_lshl_or_b32 v5, v6, 1, v5")
    e("v_bfe_u32 v6, v3, 3, 1")
    e("v_or_b32 v5, v5, v6")
    e("v_xor_b32 v5, v5, v4")
    e("v_lshlrev_b32 v5, 4, v5")
    e(f"v_lshl_add_u32 v{KB0}, v3, 7, v5")
    e("v_bfe_u32 v5, v2, 2, 2")
    e("v_lshl_add_u32 v6, v4, 2, v5")
    e("v_lshlrev_b32 v6, 7, v6")
    e("v_bfe_u32 v7, v2, 4, 1")
    e("v_lshlrev_b32 v7, 1, v7")
    e("v_bfe_u32 v8, v2, 1, 1")
    e("v_or_b32 v7, v7, v8")
    e("v_bfe_u32 v8, v2, 3, 1")
    e("v_lshlrev_b32 v8, 2, v8")
    e("v_lshl_or_b32 v8, v4, 1, v8")
    e("v_xor_b32 v7, v7, v8")
    e("v_lshl_add_u32 v6, v7, 4, v6")
    e("v_and_b32 v7, 1, v2")
    e(f"v_lshl_add_u32 v{VB0}, v7, 3, v6")
    e(f"s_mov_b32 s{S_NC}, 0x{f32bits(-c):08x}")
    e(f"s_lshr_b32 s{S_WH}, s{S_W}, 1")
    e(f"s_and_b32 s{S_U}, s{S_W}, 1")
    e(f"s_lshl_b32 s{S_U}, s{S_U}, 12")
    e(f"s_mul_i32 s{S_STG}, s{S_W}, {STG_WAVE}")
    e(f"s_add_u32 s{S_STG}, s{S_STG}, {STG0}")
    e(f"s_mul_i32 s{S_SO}, s{S_W}, {32*384}")
    e(f"s_add_u32 s{S_OB[0]}, s{S_HEAD[0]}, s{S_SO}")
    e(f"s_add_u32 s{S_OB[1]}, s{S_HEAD[1]}, s{S_SO}")
    stamp("issued")

    def set_ab(n, r0=AB):
        h, kind, t = tiles[n]
        base = st["slot"][n] * TILE_BYTES
        if kind == "V":
            e(f"v_add_u32 v{r0}, {base}, v{VB0}")
            e(f"v_xor_b32 v{r0+1}, 16, v{r0}")
            e(f"v_xor_b32 v{r0+2}, 64, v{r0}")
            e(f"v_xor_b32 v{r0+3}, 0x50, v{r0}")
        else:
            e(f"v_add_u32 v{r0}, {base}, v{KB0}")
            if kind == "Q":
                e(f"v_add_u32 v{r0}, s{S_U}, v{r0}")
            for j in range(1, 4):
                e(f"v_xor_b32 v{r0+j}, {32*j}, v{r0}")

    lblc = [0]
    def q_read(n, r0):
        h, kind, j = tiles[n]
        rm = RMS[h]
        lblc[0] += 1
        lab = f"L_q{lblc[0]}"
        e(f"s_cmp_eq_u32 s{S_WH}, {j}")
        e(f"s_cbranch_scc0 {lab}")
        set_ab(n, r0)
        for s in range(12):
            e(f"ds_read_b128 v[{rm.q(s)}:{rm.q(s)+3}], v{r0 + (s & 3)} offset:{(s >> 2)*8192}")
        e("s_waitcnt lgkmcnt(0)")
        g.label(lab)
        st["done"].append(n)

    def max_tile(rm, T):
        b = rm.S[T]; m = rm.MT + T
        out = [f"v_max3_f32 v{m}, v{b}, v{b+1}, v{b+2}"]
        for k in range(6):
            out.append(f"v_max3_f32 v{m}, v{m}, v{b+3+2*k}, v{b+4+2*k}")
        out.append(f"v_max_f32 v{m}, v{m}, v{b+15}")
        out.append(f"v_mul_f32 v{m}, s{S_NC}, v{m}")
        return out
    def exp_ops(rm, T, nreg):
        b = rm.S[T]
        Fm = lambda i: f"v_fmamk_f32 v{b+i}, v{b+i}, {CLIT}, v{nreg}"
        Ex = lambda i: f"v_exp_f32 v{b+i}, v{b+i}"
        out = [Fm(0), Fm(1)]
        for i in range(16):
            out.append(Ex(i))
            if i + 2 < 16: out.append(Fm(i + 2))
        return out
    def prod_half(rm, H, first=False):
        b = rm.half(H); T = H >> 1
        out = []
        if T <= 5:
            fr = rm.F[T] if T >= 1 else VT0
            for i in range(8):
                out.append(f"v_mul_f32 v{b+i}, v{fr}, v{b+i}")
        adds = []
        for i in range(8):
            if first and i < 2:
                adds.append(f"v_mov_b32 v{VL+i}, v{b+i}")
            else:
                adds.append(f"v_add_f32 v{VL+(i&1)}, v{VL+(i&1)}, v{b+i}")
        cv = [f"v_cvt_pk_bf16_f32 v{b+j}, v{b+2*j}, v{b+2*j+1}" for j in range(4)]
        for j in range(4):
            out += [adds[2*j], adds[2*j+1], cv[j]]
        return out
    def sm_head(rm):
        m = rm.MT
        out = ["s_nop 7", "s_nop 3"]
        out += max_tile(rm, 7)
        out += [f"v_min3_f32 v{NF_}, v{m}, v{m+1}, v{m+2}",
                f"v_min3_f32 v{NF_}, v{NF_}, v{m+3}, v{m+4}",
                f"v_min3_f32 v{NF_}, v{NF_}, v{m+5}, v{m+6}",
                f"v_min_f32 v{NF_}, v{NF_}, v{m+7}",
                f"v_mov_b32 v{VT0}, v{NF_}", "s_nop 1",
                f"v_permlane32_swap_b32 v{NF_}, v{VT0}", "s_nop 1",
                f"v_min_f32 v{NF_}, v{NF_}, v{VT0}",
                f"v_sub_f32 v{VT0}, v{NF_}, v{m}",
                f"v_exp_f32 v{VT0}, v{VT0}",
                f"v_sub_f32 v{m+5}, v{NF_}, v{m+5}"]
        out += prod_half(rm, 0, first=True)
        out += [f"v_exp_f32 v{rm.F[5]}, v{m+5}"]
        for T in range(1, 5):
            out.append(f"v_sub_f32 v{rm.F[T]}, v{NF_}, v{m+T}")
        for T in range(1, 5):
            out.append(f"v_exp_f32 v{rm.F[T]}, v{rm.F[T]}")
        out.append("s_nop 0")
        return out
    def inv_l(rm):
        return [f"v_add_f32 v{VL}, v{VL}, v{VL+1}",
                f"v_mov_b32 v{VT0}, v{VL}", "s_nop 1",
                f"v_permlane32_swap_b32 v{VL}, v{VT0}", "s_nop 1",
                f"v_add_f32 v{VL}, v{VL}, v{VT0}",
                f"v_rcp_f32 v{rm.INV}, v{VL}"]
    def ep_addr(rm):
        SW, SR, SO = rm.SW, rm.SR, rm.SO
        return [f"v_mbcnt_lo_u32_b32 v{VT0}, -1, 0",
                f"v_mbcnt_hi_u32_b32 v{VT0}, -1, v{VT0}",
                f"v_and_b32 v{SR}, 31, v{VT0}",
                f"v_mul_u32_u24 v{SW}, {STG_PITCH}, v{SR}",
                f"v_lshrrev_b32 v{SR}, 5, v{VT0}",
                f"v_lshl_add_u32 v{SW}, v{SR}, 3, v{SW}",
                f"v_add_u32 v{SW}, s{S_STG}, v{SW}",
                f"v_lshrrev_b32 v{SO}, 3, v{VT0}",
                f"v_mul_u32_u24 v{SR}, {STG_PITCH}, v{SO}",
                f"v_and_b32 v{VT0}, 7, v{VT0}",
                f"v_lshl_add_u32 v{SR}, v{VT0}, 4, v{SR}",
                f"v_add_u32 v{SR}, s{S_STG}, v{SR}",
                f"v_mul_u32_u24 v{SO}, 384, v{SO}",
                f"v_lshl_add_u32 v{SO}, v{VT0}, 4, v{SO}"]
    def ep_block(h, b):
        rm = RMS[h]
        ops = []
        for dd in range(2):
            R = rm.O[2*b + dd]
            for gq in range(4):
                B = R + 4 * gq
                for i in range(4):
                    ops.append(("v", f"v_mul_f32 v{B+i}, v{rm.INV}, v{B+i}"))
                ops.append(("v", f"v_cvt_pk_bf16_f32 v{B}, v{B}, v{B+1}"))
                ops.append(("v", f"v_cvt_pk_bf16_f32 v{B+1}, v{B+2}, v{B+3}"))
                ops.append(("dsw", f"ds_write_b64 v{rm.SW}, v[{B}:{B+1}] offset:{(4*dd+gq)*16}", ("ow", h, b)))
        R = rm.O[2*b]
        for i in range(4):
            D = R + 4 * i
            ops.append(("dsr", f"ds_read_b128 v[{D}:{D+3}], v{rm.SR} offset:{i*8*STG_PITCH}", ("or", h, b, i)))
        for i in range(4):
            D = R + 4 * i
            ops.append(("wl", ("or", h, b, i)))
            ops.append(("s", f"s_add_u32 s{S_ST}, s{S_OB[h]}, {3072*i}"))
            ops.append(("st", f"buffer_store_dwordx4 v[{D}:{D+3}], v{rm.SO}, s[{SRD_O}:{SRD_O+3}], s{S_ST} offen offset:{128*b}{fl['O']}", ("O", h)))
        return ops
    def emit_op(op):
        if isinstance(op, str):
            e(op); return
        k = op[0]
        if k in ("v", "s"): e(op[1])
        elif k in ("dsw", "dsr"): e(op[1]); g.lg_issue(op[2])
        elif k == "wl": e(f"s_waitcnt lgkmcnt({g.lg_wait(op[1])})")
        elif k == "st": e(op[1]); g.vm_issue(op[2])
        elif k == "sync": sync(op[1])
        elif k == "qread": q_read(op[1], op[2])
        elif k == "stamp": stamp(op[1])
        else: raise ValueError(op)

    items = []
    def spread(ops, lo, hi):
        n = hi - lo
        assert n > 0
        for k, op in enumerate(ops):
            items[lo + (k * n) // len(ops)]["post"].append(op)

    base = {}
    for h in range(2):
        rm = RMS[h]
        base[(h, "K")] = len(items)
        for t in range(4):
            n = tid[(h, "K", t)]
            for u in range(2):
                for s in range(12):
                    d = rm.S[2 * t + u]
                    items.append(dict(tile=n,
                        reads=[f"ds_read_b128 v[{{fr}}:{{fr3}}], v{AB + (s & 3)} offset:{(s >> 2)*8192 + u*4096}"],
                        mfma=f"v_mfma_f32_32x32x16_bf16 v[{d}:{d+15}], v[{{fr}}:{{fr3}}], v[{rm.q(s)}:{rm.q(s)+3}], " + ("0" if s == 0 else f"v[{d}:{d+15}]"),
                        pre=[], post=[]))
        base[(h, "V")] = len(items)
        for t in range(4):
            n = tid[(h, "V", t)]
            if t < 3:
                order = [(ks, dt) for ks in range(4) for dt in range(6)]
            else:
                order = [(ks, dt) for ks in range(2) for dt in range(6)] + \
                        [(ks, dt) for b in (2, 1, 0) for dt in (2*b, 2*b+1) for ks in (2, 3)]
            for ks, dt in order:
                d = rm.O[dt]
                H = 4 * t + ks
                pk = rm.half(H)
                first = (t == 0 and ks == 0)
                items.append(dict(tile=n,
                    reads=[f"ds_read_b64_tr_b16 v[{{fr}}:{{fr1}}], v{AB + 2*(dt & 1)} offset:{(dt >> 1)*8192 + ks*2048}",
                           f"ds_read_b64_tr_b16 v[{{fr2}}:{{fr3}}], v{AB + 2*(dt & 1) + 1} offset:{(dt >> 1)*8192 + ks*2048 + 1024}"],
                    mfma=f"v_mfma_f32_32x32x16_bf16 v[{d}:{d+15}], v[{{fr}}:{{fr3}}], v[{pk}:{pk+3}], " + ("0" if first else f"v[{d}:{d+15}]"),
                    pre=[], post=[]))
    NI = len(items)
    for h in range(2):
        rm = RMS[h]
        K0 = base[(h, "K")]; V0 = base[(h, "V")]
        for T in range(7):
            spread(max_tile(rm, T), K0 + 12*(T+1) + 4, K0 + 12*(T+1) + 8)
        for T in range(6):
            spread(exp_ops(rm, T, rm.MT + T), K0 + 12*(T+1) + 8, K0 + 12*(T+2) + 8)
        items[V0]["pre"] += sm_head(rm)
        for H in range(1, 14):
            spread(prod_half(rm, H), V0 + 6*(H-1), V0 + 6*H - 1)
        e6 = exp_ops(rm, 6, NF_); e7 = exp_ops(rm, 7, NF_)
        spread(e6, V0 + 0, V0 + 58)
        spread(e7, V0 + 6, V0 + 64)
    for h in range(2):
        rm = RMS[h]
        V0 = base[(h, "V")]
        spread(prod_half(rm, 14), V0 + 72, V0 + 83)
        spread(prod_half(rm, 15), V0 + 73, V0 + 84)
        items[V0 + 84]["post"] += inv_l(rm) + ep_addr(rm)
        if h == 0:
            K1 = base[(1, "K")]
            b2 = ep_block(0, 2); b1 = ep_block(0, 1); b0 = ep_block(0, 0)
            spread(b2, V0 + 91, K1 + 4)
            spread(b1, K1 + 4, K1 + 20)
            spread(b0, K1 + 20, K1 + 44)
            items[V0 + 48 + 3]["post"] += [("sync", tid[(1, "Q", 0)]), ("qread", tid[(1, "Q", 0)], rm.QA)]
            items[V0 + 48 + 11]["post"] += [("sync", tid[(1, "Q", 1)]), ("qread", tid[(1, "Q", 1)], rm.QA)]
            items[V0 + 72 + 3]["post"] += [("sync", tid[(1, "Q", 2)]), ("qread", tid[(1, "Q", 2)], rm.QA)]
            items[V0 + 72 + 11]["post"] += [("sync", tid[(1, "Q", 3)]), ("qread", tid[(1, "Q", 3)], rm.QA)]
            items[V0 + 95]["post"] += [("stamp", "endA")]
    tail = []
    rm = RMS[1]; V0 = base[(1, "V")]
    b2 = ep_block(1, 2)
    k = len(b2) // 2
    spread(b2[:k], V0 + 91, V0 + 96)
    tail = b2[k:] + ep_block(1, 1) + ep_block(1, 0)

    for j in range(4):
        n = tid[(0, "Q", j)]
        sync(n)
        q_read(n, AB)
    def fmt(s, i):
        fr = FR + 4 * (i % NF)
        return s.format(fr=fr, fr1=fr + 1, fr2=fr + 2, fr3=fr + 3)
    def issue_reads(j):
        it = items[j]
        if j == 0 or items[j - 1]["tile"] != it["tile"]:
            sync(it["tile"])
            set_ab(it["tile"])
        for r in it["reads"]:
            e(fmt(r, j)); g.lg_issue(("f", j))
    for j in range(NF - 1):
        issue_reads(j)
    st["initems"] = True
    last_dma = -100
    for i, it in enumerate(items):
        if opt.prio and i % 6 == 0:
            ph = (i + NF - 1) % 24
            if ph < 6:
                pass
        if opt.prio:
            ph = (i + NF - 1) % 24
            if ph % 6 == 0:
                e(f"s_setprio {3 - ph // 6}")
        for op in it["pre"]: emit_op(op)
        e(f"s_waitcnt lgkmcnt({g.lg_wait(('f', i))})")
        e(fmt(it["mfma"], i))
        if i + 1 == NI or items[i + 1]["tile"] != it["tile"]:
            st["done"].append(it["tile"])
        j = i + NF - 1
        if j < NI: issue_reads(j)
        if pend and i - last_dma >= opt.dmagap:
            emit_dma(); last_dma = i
        for op in it["post"]: emit_op(op)
    assert not pend
    stamp("mfma_done")
    for op in tail: emit_op(op)
    stamp("ep_done")
    if opt.padto:
        e("s_waitcnt vmcnt(0)")
        g.label("L_spin")
        e("s_sleep 2")
        e("s_memrealtime s[50:51]")
        e("s_waitcnt lgkmcnt(0)")
        e("s_sub_u32 s52, s50, s48")
        e(f"s_cmp_lt_u32 s52, {opt.padto}")
        e("s_cbranch_scc1 L_spin")
    if opt.stamp:
        e("s_waitcnt vmcnt(0)")
        stamp("end")
        e("s_memtime s[46:47]")
        e("s_waitcnt lgkmcnt(0)")
        e("s_mov_b32 s42, 0x10000000")
        e("s_mov_b32 s43, 0x00020000")
        e("s_lshl_b32 s33, s2, 3")
        e(f"s_add_u32 s33, s33, s{S_W}")
        e("s_lshl_b32 s33, s33, 8")
        e("v_mov_b32 v1, 0")
        for i in range(len(stamps)):
            e(f"v_mov_b32 v0, s{48+2*i}")
            e(f"buffer_store_dword v0, v1, s[40:43], s33 offen offset:{4*i}")
        e("s_sub_u32 s46, s46, s44")
        e("v_mov_b32 v0, s46")
        e(f"buffer_store_dword v0, v1, s[40:43], s33 offen offset:{4*len(stamps)}")
        print("nstamps", len(stamps), "stamps:", " ".join(stamps), file=sys.stderr)
        assert 48 + 2 * len(stamps) <= 102
    g.label("L_end")
    e("s_endpgm")

    out = HEADER
    out += f"; @launch grid=(256,1,1) block=(512,1,1) lds={LDS_BYTES}\n"
    out += '.amdgcn_target "amdgcn-amd-amdhsa--gfx950"\n.text\n'
    out += f".globl {NAME}\n.p2align 8\n.type {NAME},@function\n{NAME}:\n"
    out += "\n".join(g.L) + "\n"
    out += f""".section .rodata,"a"
.p2align 6
.amdhsa_kernel {NAME}
  .amdhsa_next_free_vgpr 256
  .amdhsa_next_free_sgpr {102 if (opt.stamp or opt.padto) else 48}
  .amdhsa_accum_offset 256
  .amdhsa_group_segment_fixed_size 0
  .amdhsa_kernarg_size 48
  .amdhsa_user_sgpr_count 2
  .amdhsa_user_sgpr_kernarg_segment_ptr 1
  .amdhsa_system_sgpr_workgroup_id_x 1
.end_amdhsa_kernel
"""
    return out

if __name__ == "__main__":
    ap = argparse.ArgumentParser()
    ap.add_argument("-o", default="standalone__mha_softmax__near_ridge.s")
    ap.add_argument("--nslot", type=int, default=5)
    ap.add_argument("--nf", type=int, default=5)
    ap.add_argument("--look", type=int, default=3)
    ap.add_argument("--pro", type=int, default=3)
    ap.add_argument("--fl_q", default="")
    ap.add_argument("--fl_k", default="")
    ap.add_argument("--fl_v", default="")
    ap.add_argument("--fl_o", default="")
    ap.add_argument("--headmap", type=int, default=0)
    ap.add_argument("--stamp", type=int, default=0)
    ap.add_argument("--dmagap", type=int, default=0)
    ap.add_argument("--prio", type=int, default=0)
    ap.add_argument("--padto", type=int, default=0)
    opt = ap.parse_args()
    open(opt.o, "w").write(build(opt))
```

```python
import sys, math, struct, argparse

HEADER = """; Kernarg layout for this problem (48 bytes, ptrs only, base s[0:1]):
;   offset   0: d_in[0] q  shape=(16, 32, 256, 192) dtype=bfloat16 strides=(3145728, 98304, 384, 2) contiguous=True
;   offset   8: d_in[1] k  shape=(16, 32, 256, 192) dtype=bfloat16 strides=(3145728, 98304, 384, 2) contiguous=True
;   offset  16: d_in[2] v  shape=(16, 32, 256, 192) dtype=bfloat16 strides=(3145728, 98304, 384, 2) contiguous=True
"""
NAME = "standalone__mha_softmax__near_ridge_kernel"
HEAD_BYTES = 256 * 384
TILE_BYTES = 64 * 384
TOTAL_BYTES = 512 * HEAD_BYTES
STG_PITCH = 144
STG_WAVE = 32 * STG_PITCH

def f32bits(x):
    return struct.unpack("<I", struct.pack("<f", x))[0]

FR = 224
VD = 244
AB = 245
KB0 = 249
NF_ = 250
VB0 = 251
VL = 252
VT0, VT1 = 254, 255
SRD_Q, SRD_K, SRD_V, SRD_O = 12, 16, 20, 24
S_W1024 = 28
S_HEAD = [29, 30]
S_TOFF = 31
S_NC = 32
S_WH = 34
S_U = 35
S_STG = 36
S_SO = 37
S_ST = 38
S_OB = [39, 33]
S_W = 3

class RM:
    def __init__(self, S, Q, O, MT):
        self.S = [16 * b for b in S]
        self.Q = [16 * b for b in Q]
        self.O = [16 * b for b in O]
        self.MT = 16 * MT
        s0 = self.S[0]
        self.F = {1: s0 + 4, 2: s0 + 5, 3: s0 + 6, 4: s0 + 7, 5: VT1}
        self.QA = s0
        self.SW, self.SR, self.SO, self.INV = s0 + 8, s0 + 9, s0 + 10, s0 + 11
    def q(self, s):
        return self.Q[s // 4] + 4 * (s % 4)
    def half(self, H):
        return self.S[H >> 1] + 8 * (H & 1)
RMS = [RM([0,1,2,3,4,5,6,7], [8,9,10], [8,9,10,11,12,13], 13),
       RM([4,5,6,7,0,8,9,10], [1,2,3], [1,2,3,11,12,13], 13)]

class Gen:
    def __init__(self):
        self.L = []; self.vm = []; self.lg = []
    def e(self, s): self.L.append("    " + s)
    def c(self, s): self.L.append("    ; " + s)
    def label(self, s): self.L.append(s + ":")
    def vm_issue(self, tag): self.vm.append(tag)
    def vm_wait(self, tags):
        last = -1
        for i, t in enumerate(self.vm):
            if t in tags: last = i
        assert last >= 0, tags
        return min(63, len(self.vm) - 1 - last)
    def lg_issue(self, tag): self.lg.append(tag)
    def lg_wait(self, tag):
        last = -1
        for i, t in enumerate(self.lg):
            if t == tag: last = i
        assert last >= 0, tag
        return min(15, len(self.lg) - 1 - last)

def build(opt):
    g = Gen(); e = g.e
    NS, NF, LOOK = opt.nslot, opt.nf, opt.look
    assert FR + 4 * NF <= VD
    STG0 = NS * TILE_BYTES
    LDS_BYTES = STG0 + 8 * STG_WAVE
    if opt.memonly and LDS_BYTES > 163840:
        STG0 = 0; LDS_BYTES = NS * TILE_BYTES
    assert LDS_BYTES <= 163840
    fl = {"Q": opt.fl_q, "K": opt.fl_k, "V": opt.fl_v, "O": opt.fl_o}
    fl["O0"] = opt.fl_o if opt.fl_oa is None else opt.fl_oa
    fl["O1"] = opt.fl_o if opt.fl_ob is None else opt.fl_ob
    fl = {k: ((" " + v.replace("+", " ")) if v else "") for k, v in fl.items()}
    c = (192 ** -0.5) * math.log2(math.e)
    CLIT = f"0x{f32bits(c):08x}"
    stamps = []
    def stamp(name):
        if not opt.stamp: return
        i = len(stamps); stamps.append(name)
        e(f"{'s_memtime' if opt.stamp == 2 else 's_memrealtime'} s[{48+2*i}:{49+2*i}]")

    tiles = [(0, "Q", j) for j in range(4)] + [(0, "K", j) for j in range(4)] + \
            [(0, "V", 0), (0, "V", 1), (0, "V", 2), (1, "Q", 0), (1, "Q", 1), (0, "V", 3), (1, "Q", 2), (1, "Q", 3)] + \
            [(1, "K", j) for j in range(4)] + [(1, "V", j) for j in range(4)]
    tid = {t: i for i, t in enumerate(tiles)}
    NT = len(tiles)
    st = dict(issued=0, free=list(range(NS)), slot={}, done=[], released=set(), synced=-1)

    e("s_cmp_ge_u32 s2, 256")
    e("s_cbranch_scc1 L_end")
    if opt.stamp:
        e("s_memtime s[44:45]")
        e("s_load_dwordx2 s[40:41], s[0:1], 40")
    stamp("start")
    if opt.padto:
        e("s_memrealtime s[48:49]")
    e("s_load_dwordx4 s[4:7], s[0:1], 0")
    e("s_load_dwordx4 s[8:11], s[0:1], 16")
    e("v_lshrrev_b32 v1, 6, v0")
    e("v_and_b32 v2, 63, v0")
    e(f"v_readfirstlane_b32 s{S_W}, v1")
    e("v_and_b32 v3, 31, v2")
    e("v_lshrrev_b32 v4, 5, v2")
    e("v_lshrrev_b32 v5, 3, v2")
    e("v_lshl_add_u32 v5, v1, 3, v5")
    e("v_bfe_u32 v6, v2, 4, 1")
    e("v_lshlrev_b32 v6, 2, v6")
    e("v_lshl_or_b32 v6, v4, 1, v6")
    e("v_and_b32 v7, 1, v1")
    e("v_or_b32 v6, v6, v7")
    e("v_and_b32 v7, 7, v2")
    e("v_xor_b32 v6, v6, v7")
    e("v_mul_u32_u24 v5, 384, v5")
    e(f"v_lshl_add_u32 v{VD}, v6, 4, v5")
    e(f"s_lshl_b32 s{S_W1024}, s{S_W}, 10")
    if opt.headmap == 0:
        e(f"s_mul_i32 s{S_HEAD[0]}, s2, {HEAD_BYTES}")
        e(f"s_add_u32 s{S_HEAD[1]}, s{S_HEAD[0]}, {256*HEAD_BYTES}")
    else:
        e(f"s_mul_i32 s{S_HEAD[0]}, s2, {2*HEAD_BYTES}")
        e(f"s_add_u32 s{S_HEAD[1]}, s{S_HEAD[0]}, {HEAD_BYTES}")
    e("s_waitcnt lgkmcnt(0)")
    for srd, sp in ((SRD_Q, 4), (SRD_K, 6), (SRD_V, 8), (SRD_O, 10)):
        e(f"s_mov_b32 s{srd}, s{sp}")
        e(f"s_mov_b32 s{srd+1}, s{sp+1}")
        e(f"s_mov_b32 s{srd+2}, {TOTAL_BYTES}")
        e(f"s_mov_b32 s{srd+3}, 0x00020000")

    pend = []
    def emit_dma():
        n, b = pend.pop(0)
        h, kind, t = tiles[n]
        slot = st["slot"][n]
        srd = {"Q": SRD_Q, "K": SRD_K, "V": SRD_V}[kind]
        e(f"s_add_u32 m0, s{S_W1024}, {slot*TILE_BYTES + b*8064}")
        e(f"s_add_u32 s{S_TOFF}, s{S_HEAD[h]}, {t*TILE_BYTES}")
        e(f"buffer_load_dwordx4 v{VD}, s[{srd}:{srd+3}], s{S_TOFF} offen offset:{128*b}{fl[kind]} lds")
        g.vm_issue(("T", n))
    def issue_next(now=True):
        n = st["issued"]
        slot = st["free"].pop(0)
        st["slot"][n] = slot
        st["issued"] += 1
        for b in range(3):
            pend.append((n, b))
        if now:
            while pend: emit_dma()
    def sync(n):
        assert n == st["synced"] + 1, (n, st["synced"])
        assert n < st["issued"], f"tile {n} not issued before its sync"
        st["synced"] = n
        h, kind, t = tiles[n]
        while any(p[0] <= n for p in pend):
            emit_dma()
        g.c(f"---- sync tile {n} ({kind}{t} head {h})")
        e(f"s_waitcnt vmcnt({g.vm_wait([('T', n)])})")
        e("s_barrier")
        if opt.stamp and (h, kind, t) in STAMP_AT:
            stamp(f"{kind}{t}{'AB'[h]}")
        if opt.wbl2 and (h, kind, t) == (1, "V", opt.wbl2_at):
            assert opt.wbl2_at == 3
            e(f"s_cmp_lt_u32 s2, {8*opt.wbl2}")
            e("s_cbranch_scc0 L_nowb")
            e(f"s_cmp_eq_u32 s{S_W}, 0")
            e("s_cbranch_scc0 L_nowb")
            e("buffer_wbl2 sc1")
            g.label("L_nowb")
        for d in st["done"]:
            if d not in st["released"]:
                st["released"].add(d); st["free"].append(st["slot"][d])
        while st["issued"] < NT and st["free"] and st["issued"] - (n + 1) < LOOK:
            issue_next(now=(opt.dmagap == 0 or not st.get("initems")))
    STAMP_AT = {(0,"Q",0),(0,"K",0),(0,"K",1),(0,"K",3),(0,"V",0),(0,"V",1),(0,"V",2),(0,"V",3),(1,"K",0),(1,"K",1),(1,"K",3),(1,"V",0),(1,"V",1),(1,"V",3)}

    for n in range(opt.pro):
        issue_next()

    e("v_bfe_u32 v5, v3, 1, 1")
    e("v_lshlrev_b32 v5, 2, v5")
    e("v_bfe_u32 v6, v3, 2, 1")
    e("v_lshl_or_b32 v5, v6, 1, v5")
    e("v_bfe_u32 v6, v3, 3, 1")
    e("v_or_b32 v5, v5, v6")
    e("v_xor_b32 v5, v5, v4")
    e("v_lshlrev_b32 v5, 4, v5")
    e(f"v_lshl_add_u32 v{KB0}, v3, 7, v5")
    e("v_bfe_u32 v5, v2, 2, 2")
    e("v_lshl_add_u32 v6, v4, 2, v5")
    e("v_lshlrev_b32 v6, 7, v6")
    e("v_bfe_u32 v7, v2, 4, 1")
    e("v_lshlrev_b32 v7, 1, v7")
    e("v_bfe_u32 v8, v2, 1, 1")
    e("v_or_b32 v7, v7, v8")
    e("v_bfe_u32 v8, v2, 3, 1")
    e("v_lshlrev_b32 v8, 2, v8")
    e("v_lshl_or_b32 v8, v4, 1, v8")
    e("v_xor_b32 v7, v7, v8")
    e("v_lshl_add_u32 v6, v7, 4, v6")
    e("v_and_b32 v7, 1, v2")
    e(f"v_lshl_add_u32 v{VB0}, v7, 3, v6")
    e(f"s_mov_b32 s{S_NC}, 0x{f32bits(-c):08x}")
    e(f"s_lshr_b32 s{S_WH}, s{S_W}, 1")
    e(f"s_and_b32 s{S_U}, s{S_W}, 1")
    e(f"s_lshl_b32 s{S_U}, s{S_U}, 12")
    e(f"s_mul_i32 s{S_STG}, s{S_W}, {STG_WAVE}")
    e(f"s_add_u32 s{S_STG}, s{S_STG}, {STG0}")
    e(f"s_mul_i32 s{S_SO}, s{S_W}, {32*384}")
    e(f"s_add_u32 s{S_OB[0]}, s{S_HEAD[0]}, s{S_SO}")
    e(f"s_add_u32 s{S_OB[1]}, s{S_HEAD[1]}, s{S_SO}")
    stamp("issued")

    def set_ab(n, r0=AB):
        h, kind, t = tiles[n]
        base = st["slot"][n] * TILE_BYTES
        if kind == "V":
            e(f"v_add_u32 v{r0}, {base}, v{VB0}")
            e(f"v_xor_b32 v{r0+1}, 16, v{r0}")
            e(f"v_xor_b32 v{r0+2}, 64, v{r0}")
            e(f"v_xor_b32 v{r0+3}, 0x50, v{r0}")
        else:
            e(f"v_add_u32 v{r0}, {base}, v{KB0}")
            if kind == "Q":
                e(f"v_add_u32 v{r0}, s{S_U}, v{r0}")
            for j in range(1, 4):
                e(f"v_xor_b32 v{r0+j}, {32*j}, v{r0}")

    lblc = [0]
    def q_read(n, r0):
        h, kind, j = tiles[n]
        rm = RMS[h]
        lblc[0] += 1
        lab = f"L_q{lblc[0]}"
        e(f"s_cmp_eq_u32 s{S_WH}, {j}")
        e(f"s_cbranch_scc0 {lab}")
        set_ab(n, r0)
        for s in range(12):
            e(f"ds_read_b128 v[{rm.q(s)}:{rm.q(s)+3}], v{r0 + (s & 3)} offset:{(s >> 2)*8192}")
        e("s_waitcnt lgkmcnt(0)")
        g.label(lab)
        st["done"].append(n)

    def max_tile(rm, T):
        b = rm.S[T]; m = rm.MT + T
        out = [f"v_max3_f32 v{m}, v{b}, v{b+1}, v{b+2}"]
        for k in range(6):
            out.append(f"v_max3_f32 v{m}, v{m}, v{b+3+2*k}, v{b+4+2*k}")
        out.append(f"v_max_f32 v{m}, v{m}, v{b+15}")
        out.append(f"v_mul_f32 v{m}, s{S_NC}, v{m}")
        return out
    def exp_ops(rm, T, nreg):
        b = rm.S[T]
        Fm = lambda i: f"v_fmamk_f32 v{b+i}, v{b+i}, {CLIT}, v{nreg}"
        Ex = lambda i: f"v_exp_f32 v{b+i}, v{b+i}"
        out = [Fm(0), Fm(1)]
        for i in range(16):
            out.append(Ex(i))
            if i + 2 < 16: out.append(Fm(i + 2))
        return out
    def prod_half(rm, H, first=False):
        b = rm.half(H); T = H >> 1
        out = []
        if T <= 5:
            fr = rm.F[T] if T >= 1 else VT0
            for i in range(8):
                out.append(f"v_mul_f32 v{b+i}, v{fr}, v{b+i}")
        adds = []
        for i in range(8):
            if first and i < 2:
                adds.append(f"v_mov_b32 v{VL+i}, v{b+i}")
            else:
                adds.append(f"v_add_f32 v{VL+(i&1)}, v{VL+(i&1)}, v{b+i}")
        cv = [f"v_cvt_pk_bf16_f32 v{b+j}, v{b+2*j}, v{b+2*j+1}" for j in range(4)]
        for j in range(4):
            out += [adds[2*j], adds[2*j+1], cv[j]]
        return out
    def sm_head(rm):
        m = rm.MT
        out = ["s_nop 7", "s_nop 3"]
        out += max_tile(rm, 7)
        out += [f"v_min3_f32 v{NF_}, v{m}, v{m+1}, v{m+2}",
                f"v_min3_f32 v{NF_}, v{NF_}, v{m+3}, v{m+4}",
                f"v_min3_f32 v{NF_}, v{NF_}, v{m+5}, v{m+6}",
                f"v_min_f32 v{NF_}, v{NF_}, v{m+7}",
                f"v_mov_b32 v{VT0}, v{NF_}", "s_nop 1",
                f"v_permlane32_swap_b32 v{NF_}, v{VT0}", "s_nop 1",
                f"v_min_f32 v{NF_}, v{NF_}, v{VT0}",
                f"v_sub_f32 v{VT0}, v{NF_}, v{m}",
                f"v_exp_f32 v{VT0}, v{VT0}",
                f"v_sub_f32 v{m+5}, v{NF_}, v{m+5}"]
        out += prod_half(rm, 0, first=True)
        out += [f"v_exp_f32 v{rm.F[5]}, v{m+5}"]
        for T in range(1, 5):
            out.append(f"v_sub_f32 v{rm.F[T]}, v{NF_}, v{m+T}")
        for T in range(1, 5):
            out.append(f"v_exp_f32 v{rm.F[T]}, v{rm.F[T]}")
        out.append("s_nop 0")
        return out
    def inv_l(rm):
        return [f"v_add_f32 v{VL}, v{VL}, v{VL+1}",
                f"v_mov_b32 v{VT0}, v{VL}", "s_nop 1",
                f"v_permlane32_swap_b32 v{VL}, v{VT0}", "s_nop 1",
                f"v_add_f32 v{VL}, v{VL}, v{VT0}",
                f"v_rcp_f32 v{rm.INV}, v{VL}"]
    def ep_addr(rm):
        SW, SR, SO = rm.SW, rm.SR, rm.SO
        return [f"v_mbcnt_lo_u32_b32 v{VT0}, -1, 0",
                f"v_mbcnt_hi_u32_b32 v{VT0}, -1, v{VT0}",
                f"v_and_b32 v{SR}, 31, v{VT0}",
                f"v_mul_u32_u24 v{SW}, {STG_PITCH}, v{SR}",
                f"v_lshrrev_b32 v{SR}, 5, v{VT0}",
                f"v_lshl_add_u32 v{SW}, v{SR}, 3, v{SW}",
                f"v_add_u32 v{SW}, s{S_STG}, v{SW}",
                f"v_lshrrev_b32 v{SO}, 3, v{VT0}",
                f"v_mul_u32_u24 v{SR}, {STG_PITCH}, v{SO}",
                f"v_and_b32 v{VT0}, 7, v{VT0}",
                f"v_lshl_add_u32 v{SR}, v{VT0}, 4, v{SR}",
                f"v_add_u32 v{SR}, s{S_STG}, v{SR}",
                f"v_mul_u32_u24 v{SO}, 384, v{SO}",
                f"v_lshl_add_u32 v{SO}, v{VT0}, 4, v{SO}"]
    def ep_block(h, b):
        rm = RMS[h]
        ops = []
        for dd in range(2):
            R = rm.O[2*b + dd]
            for gq in range(4):
                B = R + 4 * gq
                for i in range(4):
                    ops.append(("v", f"v_mul_f32 v{B+i}, v{rm.INV}, v{B+i}"))
                ops.append(("v", f"v_cvt_pk_bf16_f32 v{B}, v{B}, v{B+1}"))
                ops.append(("v", f"v_cvt_pk_bf16_f32 v{B+1}, v{B+2}, v{B+3}"))
                ops.append(("dsw", f"ds_write_b64 v{rm.SW}, v[{B}:{B+1}] offset:{(4*dd+gq)*16}", ("ow", h, b)))
        R = rm.O[2*b]
        for i in range(4):
            D = R + 4 * i
            ops.append(("dsr", f"ds_read_b128 v[{D}:{D+3}], v{rm.SR} offset:{i*8*STG_PITCH}", ("or", h, b, i)))
        for i in range(4):
            D = R + 4 * i
            ops.append(("wl", ("or", h, b, i)))
            ops.append(("s", f"s_add_u32 s{S_ST}, s{S_OB[h]}, {3072*i}"))
            ops.append(("st", f"buffer_store_dwordx4 v[{D}:{D+3}], v{rm.SO}, s[{SRD_O}:{SRD_O+3}], s{S_ST} offen offset:{128*b}{fl['O%d' % h]}", ("O", h)))
        return ops
    def emit_op(op):
        if isinstance(op, str):
            e(op); return
        k = op[0]
        if k in ("v", "s"): e(op[1])
        elif k in ("dsw", "dsr"): e(op[1]); g.lg_issue(op[2])
        elif k == "wl": e(f"s_waitcnt lgkmcnt({g.lg_wait(op[1])})")
        elif k == "st": e(op[1]); g.vm_issue(op[2])
        elif k == "sync": sync(op[1])
        elif k == "qread": q_read(op[1], op[2])
        elif k == "stamp": stamp(op[1])
        else: raise ValueError(op)

    items = []
    def spread(ops, lo, hi):
        n = hi - lo
        assert n > 0
        for k, op in enumerate(ops):
            items[lo + (k * n) // len(ops)]["post"].append(op)

    base = {}
    for h in range(2):
        rm = RMS[h]
        base[(h, "K")] = len(items)
        for t in range(4):
            n = tid[(h, "K", t)]
            for u in range(2):
                for s in range(12):
                    d = rm.S[2 * t + u]
                    items.append(dict(tile=n,
                        reads=[f"ds_read_b128 v[{{fr}}:{{fr3}}], v{AB + (s & 3)} offset:{(s >> 2)*8192 + u*4096}"],
                        mfma=f"v_mfma_f32_32x32x16_bf16 v[{d}:{d+15}], v[{{fr}}:{{fr3}}], v[{rm.q(s)}:{rm.q(s)+3}], " + ("0" if s == 0 else f"v[{d}:{d+15}]"),
                        pre=[], post=[]))
        base[(h, "V")] = len(items)
        for t in range(4):
            n = tid[(h, "V", t)]
            if t < 3:
                order = [(ks, dt) for ks in range(4) for dt in range(6)]
            else:
                order = [(ks, dt) for ks in range(2) for dt in range(6)] + \
                        [(ks, dt) for b in (2, 1, 0) for dt in (2*b, 2*b+1) for ks in (2, 3)]
            for ks, dt in order:
                d = rm.O[dt]
                H = 4 * t + ks
                pk = rm.half(H)
                first = (t == 0 and ks == 0)
                items.append(dict(tile=n,
                    reads=[f"ds_read_b64_tr_b16 v[{{fr}}:{{fr1}}], v{AB + 2*(dt & 1)} offset:{(dt >> 1)*8192 + ks*2048}",
                           f"ds_read_b64_tr_b16 v[{{fr2}}:{{fr3}}], v{AB + 2*(dt & 1) + 1} offset:{(dt >> 1)*8192 + ks*2048 + 1024}"],
                    mfma=f"v_mfma_f32_32x32x16_bf16 v[{d}:{d+15}], v[{{fr}}:{{fr3}}], v[{pk}:{pk+3}], " + ("0" if first else f"v[{d}:{d+15}]"),
                    pre=[], post=[]))
    NI = len(items)
    for h in range(2):
        rm = RMS[h]
        K0 = base[(h, "K")]; V0 = base[(h, "V")]
        for T in range(7):
            spread(max_tile(rm, T), K0 + 12*(T+1) + 4, K0 + 12*(T+1) + 8)
        for T in range(6):
            spread(exp_ops(rm, T, rm.MT + T), K0 + 12*(T+1) + 8, K0 + 12*(T+2) + 8)
        items[V0]["pre"] += sm_head(rm)
        for H in range(1, 14):
            spread(prod_half(rm, H), V0 + 6*(H-1), V0 + 6*H - 1)
        e6 = exp_ops(rm, 6, NF_); e7 = exp_ops(rm, 7, NF_)
        spread(e6, V0 + 0, V0 + 58)
        spread(e7, V0 + 6, V0 + 64)
    for h in range(2):
        rm = RMS[h]
        V0 = base[(h, "V")]
        spread(prod_half(rm, 14), V0 + 72, V0 + 83)
        spread(prod_half(rm, 15), V0 + 73, V0 + 84)
        items[V0 + 84]["post"] += inv_l(rm) + ep_addr(rm)
        if h == 0:
            K1 = base[(1, "K")]
            b2 = ep_block(0, 2); b1 = ep_block(0, 1); b0 = ep_block(0, 0)
            spread(b2, V0 + 91, K1 + 4)
            spread(b1, K1 + 4, K1 + 20)
            spread(b0, K1 + 20, K1 + 44)
            items[V0 + 48 + 3]["post"] += [("sync", tid[(1, "Q", 0)]), ("qread", tid[(1, "Q", 0)], rm.QA)]
            items[V0 + 48 + 11]["post"] += [("sync", tid[(1, "Q", 1)]), ("qread", tid[(1, "Q", 1)], rm.QA)]
            items[V0 + 72 + 3]["post"] += [("sync", tid[(1, "Q", 2)]), ("qread", tid[(1, "Q", 2)], rm.QA)]
            items[V0 + 72 + 11]["post"] += [("sync", tid[(1, "Q", 3)]), ("qread", tid[(1, "Q", 3)], rm.QA)]
            items[V0 + 95]["post"] += [("stamp", "endA")]
    tail = []
    rm = RMS[1]; V0 = base[(1, "V")]
    b2 = ep_block(1, 2)
    k = len(b2) // 2
    spread(b2[:k], V0 + 91, V0 + 96)
    tail = b2[k:] + ep_block(1, 1) + ep_block(1, 0)

    for j in range(4):
        n = tid[(0, "Q", j)]
        sync(n)
        q_read(n, AB)
    def fmt(s, i):
        fr = FR + 4 * (i % NF)
        return s.format(fr=fr, fr1=fr + 1, fr2=fr + 2, fr3=fr + 3)
    def issue_reads(j):
        it = items[j]
        if j == 0 or items[j - 1]["tile"] != it["tile"]:
            sync(it["tile"])
            set_ab(it["tile"])
        for r in it["reads"]:
            if opt.memonly == 2:
                g.lg_issue(("f", j)); g.lg.pop(); g.lg.append(("f", j)); continue
            e(fmt(r, j)); g.lg_issue(("f", j))
    for j in range(NF - 1):
        issue_reads(j)
    st["initems"] = True
    last_dma = -100
    for i, it in enumerate(items):
        if opt.prio and i % 6 == 0:
            ph = (i + NF - 1) % 24
            if ph < 6:
                pass
        if opt.prio:
            ph = (i + NF - 1) % 24
            if ph % 6 == 0:
                e(f"s_setprio {3 - ph // 6}")
        if not opt.memonly:
            for op in it["pre"]: emit_op(op)
        e(f"s_waitcnt lgkmcnt({g.lg_wait(('f', i))})")
        if not opt.memonly:
            e(fmt(it["mfma"], i))
        if i + 1 == NI or items[i + 1]["tile"] != it["tile"]:
            st["done"].append(it["tile"])
        j = i + NF - 1
        if j < NI: issue_reads(j)
        if pend and i - last_dma >= opt.dmagap:
            emit_dma(); last_dma = i
        for op in it["post"]:
            if opt.memonly and (isinstance(op, str) or op[0] == "v"):
                if isinstance(op, str) and ("mbcnt" in op or "u32" in op or "v_and" in op or "v_lshr" in op):
                    emit_op(op)
                continue
            emit_op(op)
    assert not pend
    stamp("mfma_done")
    for op in tail:
        if opt.memonly and op[0] == "v": continue
        emit_op(op)
    stamp("ep_done")
    if opt.padto:
        e("s_waitcnt vmcnt(0)")
        g.label("L_spin")
        e("s_sleep 2")
        e("s_memrealtime s[50:51]")
        e("s_waitcnt lgkmcnt(0)")
        e("s_sub_u32 s52, s50, s48")
        e(f"s_cmp_lt_u32 s52, {opt.padto}")
        e("s_cbranch_scc1 L_spin")
    if opt.stamp:
        e("s_waitcnt vmcnt(0)")
        stamp("end")
        e("s_memtime s[46:47]")
        e("s_waitcnt lgkmcnt(0)")
        e("s_mov_b32 s42, 0x10000000")
        e("s_mov_b32 s43, 0x00020000")
        e("s_lshl_b32 s33, s2, 3")
        e(f"s_add_u32 s33, s33, s{S_W}")
        e("s_lshl_b32 s33, s33, 8")
        e("v_mov_b32 v1, 0")
        for i in range(len(stamps)):
            e(f"v_mov_b32 v0, s{48+2*i}")
            e(f"buffer_store_dword v0, v1, s[40:43], s33 offen offset:{4*i}")
        e("s_sub_u32 s46, s46, s44")
        e("v_mov_b32 v0, s46")
        e(f"buffer_store_dword v0, v1, s[40:43], s33 offen offset:{4*len(stamps)}")
        print("nstamps", len(stamps), "stamps:", " ".join(stamps), file=sys.stderr)
        assert 48 + 2 * len(stamps) <= 102
    g.label("L_end")
    e("s_endpgm")

    out = HEADER
    out += f"; @launch grid=(256,1,1) block=(512,1,1) lds={LDS_BYTES}\n"
    out += '.amdgcn_target "amdgcn-amd-amdhsa--gfx950"\n.text\n'
    out += f".globl {NAME}\n.p2align 8\n.type {NAME},@function\n{NAME}:\n"
    out += "\n".join(g.L) + "\n"
    out += f""".section .rodata,"a"
.p2align 6
.amdhsa_kernel {NAME}
  .amdhsa_next_free_vgpr 256
  .amdhsa_next_free_sgpr {102 if (opt.stamp or opt.padto) else 48}
  .amdhsa_accum_offset 256
  .amdhsa_group_segment_fixed_size 0
  .amdhsa_kernarg_size 48
  .amdhsa_user_sgpr_count 2
  .amdhsa_user_sgpr_kernarg_segment_ptr 1
  .amdhsa_system_sgpr_workgroup_id_x 1
.end_amdhsa_kernel
"""
    return out

if __name__ == "__main__":
    ap = argparse.ArgumentParser()
    ap.add_argument("-o", default="standalone__mha_softmax__near_ridge.s")
    ap.add_argument("--nslot", type=int, default=5)
    ap.add_argument("--nf", type=int, default=5)
    ap.add_argument("--look", type=int, default=3)
    ap.add_argument("--pro", type=int, default=3)
    ap.add_argument("--fl_q", default="")
    ap.add_argument("--fl_k", default="")
    ap.add_argument("--fl_v", default="")
    ap.add_argument("--fl_o", default="")
    ap.add_argument("--headmap", type=int, default=0)
    ap.add_argument("--stamp", type=int, default=0)
    ap.add_argument("--dmagap", type=int, default=0)
    ap.add_argument("--prio", type=int, default=0)
    ap.add_argument("--memonly", type=int, default=0)
    ap.add_argument("--fl_oa", default=None)
    ap.add_argument("--fl_ob", default=None)
    ap.add_argument("--wbl2", type=int, default=0)
    ap.add_argument("--wbl2_at", type=int, default=3)
    ap.add_argument("--padto", type=int, default=0)
    opt = ap.parse_args()
    open(opt.o, "w").write(build(opt))
```

```python
import sys, math, struct, argparse

HEADER = """; Kernarg layout for this problem (48 bytes, ptrs only, base s[0:1]):
;   offset   0: d_in[0] q  shape=(16, 32, 256, 192) dtype=bfloat16 strides=(3145728, 98304, 384, 2) contiguous=True
;   offset   8: d_in[1] k  shape=(16, 32, 256, 192) dtype=bfloat16 strides=(3145728, 98304, 384, 2) contiguous=True
;   offset  16: d_in[2] v  shape=(16, 32, 256, 192) dtype=bfloat16 strides=(3145728, 98304, 384, 2) contiguous=True
"""
NAME = "standalone__mha_softmax__near_ridge_kernel"
HEAD_BYTES = 256 * 384
TILE_BYTES = 64 * 384
TOTAL_BYTES = 512 * HEAD_BYTES
STG_PITCH = 128
STG_WAVE = 32 * STG_PITCH
ZB_SLOT = 4 * TILE_BYTES
STG0 = 5 * TILE_BYTES
SPARE0 = STG0 + 8 * STG_WAVE
LDS_BYTES = SPARE0 + 2 * STG_WAVE
ZC0 = 2 * TILE_BYTES
S_ZB = 4
S_QW = 5
S_X0, S_X1 = 6, 7
S_ZC = 8
S_T2 = 9

def f32bits(x):
    return struct.unpack("<I", struct.pack("<f", x))[0]

FR = 224
SWR, SRR, SOR, INVR = 240, 241, 242, 243
VD = 244
AB = 245
KB0 = 249
NF_ = 250
VB0 = 251
VL = 252
VT0, VT1 = 254, 255
SRD_Q, SRD_K, SRD_V, SRD_O = 12, 16, 20, 24
S_W1024 = 28
S_HEAD = [29, 30]
S_TOFF = 31
S_NC = 32
S_WH = 34
S_U = 35
S_STG = 36
S_SO = 37
S_ST = 38
S_OB = [39, 33]
S_W = 3

class RM:
    def __init__(self, S, Q, O, MT):
        self.S = [16 * b for b in S]
        self.Q = [16 * b for b in Q]
        self.O = [16 * b for b in O]
        self.MT = 16 * MT
        s0 = self.S[0]
        self.F = {1: s0 + 4, 2: s0 + 5, 3: s0 + 6, 4: s0 + 7, 5: VT1}
        self.QA = s0
        self.SW, self.SR, self.SO, self.INV = SWR, SRR, SOR, INVR
    def q(self, s):
        return self.Q[s // 4] + 4 * (s % 4)
    def half(self, H):
        return self.S[H >> 1] + 8 * (H & 1)
RMS = [RM([0,1,2,3,4,5,6,7], [8,9,10], [8,9,10,11,12,13], 13),
       RM([4,5,6,7,0,8,9,10], [1,2,3], [1,2,3,11,12,13], 13)]

class Gen:
    def __init__(self):
        self.L = []; self.vm = []; self.lg = []
    def e(self, s): self.L.append("    " + s)
    def c(self, s): self.L.append("    ; " + s)
    def label(self, s): self.L.append(s + ":")
    def vm_issue(self, tag): self.vm.append(tag)
    def vm_wait(self, tags):
        last = -1
        for i, t in enumerate(self.vm):
            if t in tags: last = i
        assert last >= 0, tags
        return min(63, len(self.vm) - 1 - last)
    def lg_issue(self, tag): self.lg.append(tag)
    def lg_wait(self, tag):
        last = -1
        for i, t in enumerate(self.lg):
            if t == tag: last = i
        assert last >= 0, tag
        return min(15, len(self.lg) - 1 - last)

def build(opt):
    g = Gen(); e = g.e
    NS, NF, LOOK = opt.nslot, opt.nf, opt.look
    assert FR + 4 * NF <= SWR
    assert NS == 4 and LDS_BYTES == 163840
    fl = {"Q": opt.fl_q, "K": opt.fl_k, "V": opt.fl_v, "O": opt.fl_o}
    fl["O0"] = opt.fl_o if opt.fl_oa is None else opt.fl_oa
    fl["O1"] = opt.fl_o if opt.fl_ob is None else opt.fl_ob
    fl = {k: ((" " + v.replace("+", " ")) if v else "") for k, v in fl.items()}
    c = (192 ** -0.5) * math.log2(math.e)
    CLIT = f"0x{f32bits(c):08x}"
    stamps = []
    def stamp(name):
        if not opt.stamp: return
        if opt.stamp == 3:
            i = len(stamps); stamps.append(name + "_t"); stamps.append(name + "_c")
            e(f"s_memrealtime s[{48+2*i}:{49+2*i}]")
            e(f"s_memtime s[{50+2*i}:{51+2*i}]")
            return
        i = len(stamps); stamps.append(name)
        e(f"{'s_memtime' if opt.stamp == 2 else 's_memrealtime'} s[{48+2*i}:{49+2*i}]")

    tiles = [(0, "K", j) for j in range(4)] + [(0, "V", j) for j in range(4)] + \
            [(1, "K", j) for j in range(4)] + [(1, "V", j) for j in range(4)]
    tid = {t: i for i, t in enumerate(tiles)}
    NT = len(tiles)
    st = dict(issued=0, free=[0, 1, 2, 3], slot={}, done=[], released=set(), synced=-1, qdone=[], cur_item=0)

    e("s_cmp_ge_u32 s2, 256")
    e("s_cbranch_scc1 L_end")
    if opt.stamp:
        e("s_memtime s[44:45]")
        e("s_load_dwordx2 s[40:41], s[0:1], 40")
    stamp("start")
    if opt.padto:
        e("s_memrealtime s[48:49]")
    e("s_load_dwordx4 s[4:7], s[0:1], 0")
    e("s_load_dwordx4 s[8:11], s[0:1], 16")
    e("v_lshrrev_b32 v1, 6, v0")
    e("v_and_b32 v2, 63, v0")
    e(f"v_readfirstlane_b32 s{S_W}, v1")
    e("v_and_b32 v3, 31, v2")
    e("v_lshrrev_b32 v4, 5, v2")
    e("v_lshrrev_b32 v5, 3, v2")
    e("v_lshl_add_u32 v5, v1, 3, v5")
    e("v_bfe_u32 v6, v2, 4, 1")
    e("v_lshlrev_b32 v6, 2, v6")
    e("v_lshl_or_b32 v6, v4, 1, v6")
    e("v_and_b32 v7, 1, v1")
    e("v_or_b32 v6, v6, v7")
    e("v_and_b32 v7, 7, v2")
    e("v_xor_b32 v6, v6, v7")
    e("v_mul_u32_u24 v5, 384, v5")
    e(f"v_lshl_add_u32 v{VD}, v6, 4, v5")
    e(f"s_lshl_b32 s{S_W1024}, s{S_W}, 10")
    if opt.headmap == 0:
        e(f"s_mul_i32 s{S_HEAD[0]}, s2, {HEAD_BYTES}")
        e(f"s_add_u32 s{S_HEAD[1]}, s{S_HEAD[0]}, {256*HEAD_BYTES}")
    else:
        e(f"s_mul_i32 s{S_HEAD[0]}, s2, {2*HEAD_BYTES}")
        e(f"s_add_u32 s{S_HEAD[1]}, s{S_HEAD[0]}, {HEAD_BYTES}")
    if opt.fakemem:
        e(f"s_and_b32 s{S_HEAD[0]}, s2, 7")
        e(f"s_mul_i32 s{S_HEAD[0]}, s{S_HEAD[0]}, {HEAD_BYTES}")
        e(f"s_mov_b32 s{S_HEAD[1]}, s{S_HEAD[0]}")
    if opt.rot:
        if opt.rot == 1:
            e("s_and_b32 s90, s2, 3")
        elif opt.rot == 2:
            e("s_lshr_b32 s90, s2, 3")
            e("s_and_b32 s90, s90, 3")
        elif opt.rot == 3:
            e("s_lshr_b32 s90, s2, 3")
            e("s_add_u32 s90, s90, s2")
            e("s_and_b32 s90, s90, 3")
        for t in range(4):
            e(f"s_add_u32 s{96+t}, s90, {t}")
            e(f"s_and_b32 s{96+t}, s{96+t}, 3")
            e(f"s_mul_i32 s{92+t}, s{96+t}, {TILE_BYTES}")
    e("s_waitcnt lgkmcnt(0)")
    for srd, sp in ((SRD_Q, 4), (SRD_K, 6), (SRD_V, 8), (SRD_O, 10)):
        e(f"s_mov_b32 s{srd}, s{sp}")
        e(f"s_mov_b32 s{srd+1}, s{sp+1}")
        e(f"s_mov_b32 s{srd+2}, {TOTAL_BYTES}")
        e(f"s_mov_b32 s{srd+3}, 0x00020000")

    e(f"s_lshl_b32 s{S_T2}, s{S_W}, 12")
    e(f"s_add_u32 s{S_STG}, s{S_T2}, {STG0}")
    e(f"s_add_u32 s{S_ZB}, s{S_T2}, {ZB_SLOT}")
    e(f"s_add_u32 s{S_T2}, s{S_T2}, {SPARE0 - 6*STG_WAVE}")
    e(f"s_cmp_ge_u32 s{S_W}, 6")
    e(f"s_cselect_b32 s{S_ZB}, s{S_T2}, s{S_ZB}")
    e(f"s_mul_i32 s{S_QW}, s{S_W}, {24*384}")
    e(f"s_and_b32 s{S_X0}, s{S_W}, 1")
    e(f"s_lshl_b32 s{S_X0}, s{S_X0}, 4")
    e(f"s_xor_b32 s{S_X1}, s{S_X0}, 16")
    def q_dma(h, c, i, zone):
        e(f"v_xor_b32 v{VT0}, s{S_X0 if i % 2 == 0 else S_X1}, v{VD}")
        e(f"s_add_u32 m0, s{zone}, {i*1024}")
        e(f"s_add_u32 s{S_TOFF}, s{S_HEAD[h]}, s{S_QW}")
        e(f"s_add_u32 s{S_TOFF}, s{S_TOFF}, {i*3072 + c*128}")
        e(f"buffer_load_dwordx4 v{VT0}, s[{SRD_Q}:{SRD_Q+3}], s{S_TOFF} offen{fl['Q']} lds")
        g.vm_issue(("Qd", h, c))
    def q_rd(h, c, zone, r0):
        rm = RMS[h]
        e(f"s_waitcnt vmcnt({g.vm_wait([('Qd', h, c)])})")
        e(f"v_add_u32 v{r0}, s{zone}, v{KB0}")
        for j in range(1, 4):
            e(f"v_xor_b32 v{r0+j}, {32*j}, v{r0}")
        for j in range(4):
            sidx = 4 * c + j
            e(f"ds_read_b128 v[{rm.q(sidx)}:{rm.q(sidx)+3}], v{r0+j}")
            g.lg_issue(("q", h, c))
    pend = []
    def emit_dma():
        n, b = pend.pop(0)
        h, kind, t = tiles[n]
        slot = st["slot"][n]
        srd = {"Q": SRD_Q, "K": SRD_K, "V": SRD_V}[kind]
        e(f"s_add_u32 m0, s{S_W1024}, {slot*TILE_BYTES + b*8064}")
        if opt.rot:
            e(f"s_add_u32 s{S_TOFF}, s{S_HEAD[h]}, s{92+t}")
        else:
            e(f"s_add_u32 s{S_TOFF}, s{S_HEAD[h]}, {t*TILE_BYTES}")
        e(f"buffer_load_dwordx4 v{VD}, s[{srd}:{srd+3}], s{S_TOFF} offen offset:{128*b}{fl[kind]} lds")
        g.vm_issue(("T", n))
    def issue_next(now=True):
        n = st["issued"]
        slot = st["free"].pop(0)
        st["slot"][n] = slot
        st["issued"] += 1
        for b in range(3):
            pend.append((n, b))
        if now:
            while pend: emit_dma()
    def sync(n):
        assert n == st["synced"] + 1, (n, st["synced"])
        assert n < st["issued"], f"tile {n} not issued before its sync"
        st["synced"] = n
        h, kind, t = tiles[n]
        while any(p[0] <= n for p in pend):
            emit_dma()
        g.c(f"---- sync tile {n} ({kind}{t} head {h})")
        if not opt.nowait:
            e(f"s_waitcnt vmcnt({g.vm_wait([('T', n)])})")
        if not (opt.nobar and st.get("initems")):
            e("s_barrier")
        if opt.stamp and (h, kind, t) in STAMP_AT:
            stamp(f"{kind}{t}{'AB'[h]}")
        if opt.wbl2 and (h, kind, t) == (1, "V", opt.wbl2_at):
            assert opt.wbl2_at == 3
            e(f"s_cmp_lt_u32 s2, {8*opt.wbl2}")
            e("s_cbranch_scc0 L_nowb")
            e(f"s_cmp_eq_u32 s{S_W}, 0")
            e("s_cbranch_scc0 L_nowb")
            e("buffer_wbl2 sc1")
            g.label("L_nowb")
        for d in st["done"]:
            if d not in st["released"]:
                st["released"].add(d)
                if d == "ZC": st["free"] += [2, 3]
                else: st["free"].append(st["slot"][d])
        while st["issued"] < NT and st["free"] and st["issued"] - (n + 1) < LOOK:
            issue_next(now=(opt.dmagap == 0 or not st.get("initems")))
        if opt.stamp and opt.stampdma and (h, kind, t) in STAMP_AT:
            stamp(f"d{kind}{t}{'AB'[h]}")
    if opt.stamp == 3:
        STAMP_AT = {(0,"K",0),(0,"V",0),(0,"V",2),(1,"K",0),(1,"K",2),(1,"V",0)}
    elif opt.stampdma:
        STAMP_AT = {(0,"K",1),(0,"K",2),(0,"V",1),(0,"V",3),(1,"Q",3),(1,"K",0),(1,"K",1),(1,"K",2),(1,"K",3),(1,"V",0)}
    else:
      STAMP_AT = {(0,"Q",0),(0,"K",0),(0,"K",1),(0,"K",3),(0,"V",0),(0,"V",1),(0,"V",2),(0,"V",3),(1,"K",0),(1,"K",1),(1,"K",3),(1,"V",0),(1,"V",1),(1,"V",3)}

    issue_next()
    for i in range(4): q_dma(0, 0, i, S_STG)

    e("v_bfe_u32 v5, v3, 1, 1")
    e("v_lshlrev_b32 v5, 2, v5")
    e("v_bfe_u32 v6, v3, 2, 1")
    e("v_lshl_or_b32 v5, v6, 1, v5")
    e("v_bfe_u32 v6, v3, 3, 1")
    e("v_or_b32 v5, v5, v6")
    e("v_xor_b32 v5, v5, v4")
    e("v_lshlrev_b32 v5, 4, v5")
    e(f"v_lshl_add_u32 v{KB0}, v3, 7, v5")
    e("v_bfe_u32 v5, v2, 2, 2")
    e("v_lshl_add_u32 v6, v4, 2, v5")
    e("v_lshlrev_b32 v6, 7, v6")
    e("v_bfe_u32 v7, v2, 4, 1")
    e("v_lshlrev_b32 v7, 1, v7")
    e("v_bfe_u32 v8, v2, 1, 1")
    e("v_or_b32 v7, v7, v8")
    e("v_bfe_u32 v8, v2, 3, 1")
    e("v_lshlrev_b32 v8, 2, v8")
    e("v_lshl_or_b32 v8, v4, 1, v8")
    e("v_xor_b32 v7, v7, v8")
    e("v_lshl_add_u32 v6, v7, 4, v6")
    e("v_and_b32 v7, 1, v2")
    e(f"v_lshl_add_u32 v{VB0}, v7, 3, v6")
    e(f"s_mov_b32 s{S_NC}, 0x{f32bits(-c):08x}")
    e(f"s_mul_i32 s{S_SO}, s{S_W}, {32*384}")
    e(f"s_add_u32 s{S_OB[0]}, s{S_HEAD[0]}, s{S_SO}")
    e(f"s_add_u32 s{S_OB[1]}, s{S_HEAD[1]}, s{S_SO}")
    e("v_and_b32 v5, 7, v3")
    e(f"v_lshlrev_b32 v{SWR}, 7, v3")
    e(f"v_lshl_add_u32 v{SWR}, v5, 4, v{SWR}")
    e(f"v_lshl_add_u32 v{SWR}, v4, 3, v{SWR}")
    e(f"v_add_u32 v{SWR}, s{S_STG}, v{SWR}")
    e(f"v_lshlrev_b32 v{SRR}, 4, v2")
    e(f"v_add_u32 v{SRR}, s{S_STG}, v{SRR}")
    e("v_lshrrev_b32 v5, 3, v2")
    e("v_and_b32 v6, 7, v2")
    e("v_xor_b32 v6, v6, v5")
    e(f"v_mul_u32_u24 v{SOR}, 384, v5")
    e(f"v_lshl_add_u32 v{SOR}, v6, 4, v{SOR}")
    if opt.stamp != 3: stamp("issued")

    def set_ab(n, r0=AB):
        h, kind, t = tiles[n]
        base = st["slot"][n] * TILE_BYTES
        if kind == "V":
            e(f"v_add_u32 v{r0}, {base}, v{VB0}")
            e(f"v_xor_b32 v{r0+1}, 16, v{r0}")
            e(f"v_xor_b32 v{r0+2}, 64, v{r0}")
            e(f"v_xor_b32 v{r0+3}, 0x50, v{r0}")
        else:
            e(f"v_add_u32 v{r0}, {base}, v{KB0}")
            if kind == "Q":
                e(f"v_add_u32 v{r0}, s{S_U}, v{r0}")
            for j in range(1, 4):
                e(f"v_xor_b32 v{r0+j}, {32*j}, v{r0}")

    lblc = [0]
    def q_read(n, r0):
        h, kind, j = tiles[n]
        rm = RMS[h]
        lblc[0] += 1
        lab = f"L_q{lblc[0]}"
        if opt.rot:
            e(f"s_cmp_eq_u32 s{S_WH}, s{96+j}")
        else:
            e(f"s_cmp_eq_u32 s{S_WH}, {j}")
        e(f"s_cbranch_scc0 {lab}")
        set_ab(n, r0)
        for s in range(12):
            e(f"ds_read_b128 v[{rm.q(s)}:{rm.q(s)+3}], v{r0 + (s & 3)} offset:{(s >> 2)*8192}")
        if not st.get("initems"):
            e("s_waitcnt lgkmcnt(0)")
            g.label(lab)
            st["done"].append(n)
        else:
            g.label(lab)
            st["qdone"].append((n, st["cur_item"] + NF + 1))

    def max_tile(rm, T):
        b = rm.S[T]; m = rm.MT + T
        out = [f"v_max3_f32 v{m}, v{b}, v{b+1}, v{b+2}"]
        for k in range(6):
            out.append(f"v_max3_f32 v{m}, v{m}, v{b+3+2*k}, v{b+4+2*k}")
        out.append(f"v_max_f32 v{m}, v{m}, v{b+15}")
        out.append(f"v_mul_f32 v{m}, s{S_NC}, v{m}")
        return out
    def exp_ops(rm, T, nreg):
        b = rm.S[T]
        Fm = lambda i: f"v_fmamk_f32 v{b+i}, v{b+i}, {CLIT}, v{nreg}"
        Ex = lambda i: f"v_exp_f32 v{b+i}, v{b+i}"
        out = [Fm(0), Fm(1)]
        for i in range(16):
            out.append(Ex(i))
            if i + 2 < 16: out.append(Fm(i + 2))
        return out
    def prod_half(rm, H, first=False):
        b = rm.half(H); T = H >> 1
        out = []
        if T <= 5:
            fr = rm.F[T] if T >= 1 else VT0
            for i in range(8):
                out.append(f"v_mul_f32 v{b+i}, v{fr}, v{b+i}")
        adds = []
        for i in range(8):
            if first and i < 2:
                adds.append(f"v_mov_b32 v{VL+i}, v{b+i}")
            else:
                adds.append(f"v_add_f32 v{VL+(i&1)}, v{VL+(i&1)}, v{b+i}")
        cv = [f"v_cvt_pk_bf16_f32 v{b+j}, v{b+2*j}, v{b+2*j+1}" for j in range(4)]
        for j in range(4):
            out += [adds[2*j], adds[2*j+1], cv[j]]
        return out
    def sm_head(rm):
        m = rm.MT
        out = ["s_nop 7", "s_nop 3"]
        out += max_tile(rm, 7)
        out += [f"v_min3_f32 v{NF_}, v{m}, v{m+1}, v{m+2}",
                f"v_min3_f32 v{NF_}, v{NF_}, v{m+3}, v{m+4}",
                f"v_min3_f32 v{NF_}, v{NF_}, v{m+5}, v{m+6}",
                f"v_min_f32 v{NF_}, v{NF_}, v{m+7}",
                f"v_mov_b32 v{VT0}, v{NF_}", "s_nop 1",
                f"v_permlane32_swap_b32 v{NF_}, v{VT0}", "s_nop 1",
                f"v_min_f32 v{NF_}, v{NF_}, v{VT0}",
                f"v_sub_f32 v{VT0}, v{NF_}, v{m}",
                f"v_exp_f32 v{VT0}, v{VT0}",
                f"v_sub_f32 v{m+5}, v{NF_}, v{m+5}"]
        out += prod_half(rm, 0, first=True)
        out += [f"v_exp_f32 v{rm.F[5]}, v{m+5}"]
        for T in range(1, 5):
            out.append(f"v_sub_f32 v{rm.F[T]}, v{NF_}, v{m+T}")
        for T in range(1, 5):
            out.append(f"v_exp_f32 v{rm.F[T]}, v{rm.F[T]}")
        out.append("s_nop 0")
        return out
    def inv_l(rm):
        return [f"v_add_f32 v{VL}, v{VL}, v{VL+1}",
                f"v_mov_b32 v{VT0}, v{VL}", "s_nop 1",
                f"v_permlane32_swap_b32 v{VL}, v{VT0}", "s_nop 1",
                f"v_add_f32 v{VL}, v{VL}, v{VT0}",
                f"v_rcp_f32 v{rm.INV}, v{VL}"]
    def ep_addr(rm):
        SW, SR, SO = rm.SW, rm.SR, rm.SO
        return [f"v_mbcnt_lo_u32_b32 v{VT0}, -1, 0",
                f"v_mbcnt_hi_u32_b32 v{VT0}, -1, v{VT0}",
                f"v_and_b32 v{SR}, 31, v{VT0}",
                f"v_mul_u32_u24 v{SW}, {STG_PITCH}, v{SR}",
                f"v_lshrrev_b32 v{SR}, 5, v{VT0}",
                f"v_lshl_add_u32 v{SW}, v{SR}, 3, v{SW}",
                f"v_add_u32 v{SW}, s{S_STG}, v{SW}",
                f"v_lshrrev_b32 v{SO}, 3, v{VT0}",
                f"v_mul_u32_u24 v{SR}, {STG_PITCH}, v{SO}",
                f"v_and_b32 v{VT0}, 7, v{VT0}",
                f"v_lshl_add_u32 v{SR}, v{VT0}, 4, v{SR}",
                f"v_add_u32 v{SR}, s{S_STG}, v{SR}",
                f"v_mul_u32_u24 v{SO}, 384, v{SO}",
                f"v_lshl_add_u32 v{SO}, v{VT0}, 4, v{SO}"]
    def ep_scale(h, b, dest=None):
        rm = RMS[h]
        ops = []; pairs = []
        for dd in range(2):
            R = rm.O[2*b + dd]
            for gq in range(4):
                B = R + 4 * gq
                D = B if dest is None else dest + 2 * (4*dd + gq)
                for i in range(4):
                    ops.append(("v", f"v_mul_f32 v{B+i}, v{rm.INV}, v{B+i}"))
                ops.append(("v", f"v_cvt_pk_bf16_f32 v{D}, v{B}, v{B+1}"))
                ops.append(("v", f"v_cvt_pk_bf16_f32 v{D+1}, v{B+2}, v{B+3}"))
                pairs.append(D)
        return ops, pairs
    def ep_write(h, b, pairs, off=0):
        out = []
        for k, D in enumerate(pairs):
            if k == 0:
                out.append([("dsw", f"ds_write_b64 v{SWR}, v[{D}:{D+1}]", ("ow", h, b))])
            else:
                out.append([("v", f"v_xor_b32 v{VT0}, {16*k}, v{SWR}"),
                            ("dsw", f"ds_write_b64 v{VT0}, v[{D}:{D+1}]", ("ow", h, b))])
        return out
    def ep_rd(h, b, i, T, off=0):
        return ("dsr", f"ds_read_b128 v[{T}:{T+3}], v{SRR} offset:{off + i*1024}", ("or", h, b, i))
    def ep_st(h, b, i, T):
        return [("wl", ("or", h, b, i)),
                ("s", f"s_add_u32 s{S_ST}, s{S_OB[h]}, {3072*i}"),
                ("st", f"buffer_store_dwordx4 v[{T}:{T+3}], v{SOR}, s[{SRD_O}:{SRD_O+3}], s{S_ST} offen offset:{128*b}{fl['O%d' % h]}", ("O", h))]
    def interleave_writes(ops, pairs, h, b, off=0):
        out = []
        w = ep_write(h, b, pairs, off)
        for k in range(8):
            out += ops[6*k:6*k+6] + w[k]
        return out
    def emit_op(op):
        if isinstance(op, str):
            e(op); return
        k = op[0]
        if k in ("v", "s"): e(op[1])
        elif k in ("dsw", "dsr"): e(op[1]); g.lg_issue(op[2])
        elif k == "wl": e(f"s_waitcnt lgkmcnt({g.lg_wait(op[1])})")
        elif k == "st":
            if opt.skip_o is not None and op[2][1] in opt.skip_o: return
            e(op[1]); g.vm_issue(op[2])
        elif k == "sync": sync(op[1])
        elif k == "qdma": q_dma(op[1], op[2], op[3], op[4])
        elif k == "qrd": q_rd(op[1], op[2], op[3], op[4])
        elif k == "rel": st["done"].append(op[1])
        elif k == "stamp": stamp(op[1])
        else: raise ValueError(op)

    items = []
    def spread(ops, lo, hi):
        n = hi - lo
        assert n > 0
        for k, op in enumerate(ops):
            idx = lo + (k * n) // len(ops)
            if k > 0 and isinstance(op, tuple) and op[0] == "dsw" and f"v{VT0}," in op[1]:
                idx = last_idx
            items[idx]["post"].append(op)
            last_idx = idx

    base = {}
    for h in range(2):
        rm = RMS[h]
        base[(h, "K")] = len(items)
        for t in range(4):
            n = tid[(h, "K", t)]
            korder = [(u, s) for u in range(2) for s in range(12)]
            if h == 0 and t == 0:
                korder = [(u, s) for cb in range(3) for u in range(2) for s in range(4*cb, 4*cb+4)]
            for u, s in korder:
                if True:
                    d = rm.S[2 * t + u]
                    items.append(dict(tile=n,
                        reads=[f"ds_read_b128 v[{{fr}}:{{fr3}}], v{AB + (s & 3)} offset:{(s >> 2)*8192 + u*4096}"],
                        mfma=f"v_mfma_f32_32x32x16_bf16 v[{d}:{d+15}], v[{{fr}}:{{fr3}}], v[{rm.q(s)}:{rm.q(s)+3}], " + ("0" if s == 0 else f"v[{d}:{d+15}]"),
                        pre=[], post=[]))
        base[(h, "V")] = len(items)
        for t in range(4):
            n = tid[(h, "V", t)]
            if t < 3:
                order = [(ks, dt) for ks in range(4) for dt in range(6)]
            elif h == 1 and opt.dtmajor:
                order = [(ks, dt) for b in (2, 1, 0) for dt in (2*b, 2*b+1) for ks in range(4)]
            else:
                order = [(ks, dt) for ks in range(2) for dt in range(6)] + \
                        [(ks, dt) for b in (2, 1, 0) for dt in (2*b, 2*b+1) for ks in (2, 3)]
            for ks, dt in order:
                d = rm.O[dt]
                H = 4 * t + ks
                pk = rm.half(H)
                first = (t == 0 and ks == 0)
                items.append(dict(tile=n,
                    reads=[f"ds_read_b64_tr_b16 v[{{fr}}:{{fr1}}], v{AB + 2*(dt & 1)} offset:{(dt >> 1)*8192 + ks*2048}",
                           f"ds_read_b64_tr_b16 v[{{fr2}}:{{fr3}}], v{AB + 2*(dt & 1) + 1} offset:{(dt >> 1)*8192 + ks*2048 + 1024}"],
                    mfma=f"v_mfma_f32_32x32x16_bf16 v[{d}:{d+15}], v[{{fr}}:{{fr3}}], v[{pk}:{pk+3}], " + ("0" if first else f"v[{d}:{d+15}]"),
                    pre=[], post=[]))
    NI = len(items)
    for h in range(2):
        rm = RMS[h]
        K0 = base[(h, "K")]; V0 = base[(h, "V")]
        comp = [12 * T + 11 for T in range(8)]
        if h == 0:
            comp[0] = 19; comp[1] = 23
        for T in range(7):
            lo = K0 + comp[T] + 5
            spread(max_tile(rm, T), lo, lo + 4)
        for T in range(6):
            lo = K0 + comp[T] + 9
            spread(exp_ops(rm, T, rm.MT + T), lo, lo + 12)
        items[V0]["pre"] += sm_head(rm)
        for H in range(1, 12):
            spread(prod_half(rm, H), V0 + 6*(H-1), V0 + 6*H - 1)
        e6 = exp_ops(rm, 6, NF_); e7 = exp_ops(rm, 7, NF_)
        if h == 1 and opt.dtmajor:
            spread(e6, V0 + 0, V0 + 48)
            spread(e7, V0 + 6, V0 + 56)
        else:
            spread(e6, V0 + 0, V0 + 58)
            spread(e7, V0 + 6, V0 + 64)
    def at(idx, ops):
        items[idx]["post"] += ops
    def spread_groups(groups, lo, hi):
        n = hi - lo
        for k, grp in enumerate(groups):
            items[lo + (k * n) // len(groups)]["post"] += grp
    for h in range(2):
        rm = RMS[h]
        V0 = base[(h, "V")]
        if h == 0 or not opt.dtmajor:
            spread(prod_half(rm, 12), V0 + 66, V0 + 71)
            spread(prod_half(rm, 13), V0 + 72, V0 + 77)
            spread(prod_half(rm, 14), V0 + 72, V0 + 83)
            spread(prod_half(rm, 15), V0 + 73, V0 + 83)
            at(V0 + 84, inv_l(rm))
        else:
            spread(prod_half(rm, 12), V0 + 52, V0 + 62)
            spread(prod_half(rm, 13), V0 + 56, V0 + 66)
            spread(prod_half(rm, 14), V0 + 60, V0 + 70)
            spread(prod_half(rm, 15), V0 + 62, V0 + 71)
            at(V0 + 72, inv_l(rm))
    rmA, rmB = RMS
    V0 = base[(0, "V")]; K1 = base[(1, "K")]; V1 = base[(1, "V")]
    T0, T1 = 216, 220
    ops2, p2 = ep_scale(0, 2)
    spread(interleave_writes(ops2, p2, 0, 2), V0 + 91, K1 + 8)
    ops1, p1 = ep_scale(0, 1, dest=192)
    spread(ops1, K1 + 8, K1 + 18)
    ops0, p0 = ep_scale(0, 0, dest=176)
    spread(ops0, K1 + 18, K1 + 30)
    def rdst(h, b, i, T, ir, ist, off=0):
        at(ir, [ep_rd(h, b, i, T, off)])
        at(ist, ep_st(h, b, i, T))
    rdst(0, 2, 0, T0, K1 + 9,  K1 + 14)
    rdst(0, 2, 1, T1, K1 + 12, K1 + 19)
    rdst(0, 2, 2, T0, K1 + 17, K1 + 24)
    rdst(0, 2, 3, T1, K1 + 22, K1 + 29)
    spread_groups(ep_write(0, 1, p1), K1 + 31, K1 + 39)
    rdst(0, 1, 0, T0, K1 + 40, K1 + 45)
    rdst(0, 1, 1, T1, K1 + 47, K1 + 53)
    rdst(0, 1, 2, T0, K1 + 55, K1 + 61)
    rdst(0, 1, 3, T1, K1 + 63, K1 + 69)
    spread_groups(ep_write(0, 0, p0), K1 + 71, K1 + 79)
    rdst(0, 0, 0, T0, K1 + 80, K1 + 86)
    rdst(0, 0, 1, T1, K1 + 88, K1 + 94)
    H2 = rmB.half(2) + 4; H3 = rmB.half(3) + 4
    rdst(0, 0, 2, H2, V1 + 13, V1 + 20)
    rdst(0, 0, 3, H3, V1 + 28, V1 + 36)
    K0 = base[(0, "K")]
    for i in range(4): at(K0 + 1 + i, [("qdma", 0, 2, i, S_STG)])
    at(K0 + 5, [("qrd", 0, 1, S_ZB, 176)])
    items[K0 + 8]["pre"] += [("wl", ("q", 0, 1))]
    at(K0 + 13, [("qrd", 0, 2, S_STG, 176)])
    items[K0 + 16]["pre"] += [("wl", ("q", 0, 2))]
    for i in range(4): at(K0 + 50 + 4*i, [("qdma", 1, 0, i, S_STG)])
    for i in range(4): at(K0 + 74 + 4*i, [("qdma", 1, 1, i, S_ZB)])
    at(V0 + 24, [("qrd", 1, 0, S_STG, rmA.QA)])
    at(V0 + 29, [("wl", ("q", 1, 0))])
    for i in range(4): at(V0 + 29 + i, [("qdma", 1, 2, i, S_STG)])
    at(V0 + 36, [("qrd", 1, 1, S_ZB, rmA.QA)])
    at(V0 + opt.qc2_at, [("qrd", 1, 2, S_STG, rmA.QA)])
    items[K1 + 0]["pre"] += [("wl", ("q", 1, 0)), ("wl", ("q", 1, 1))]
    items[K1 + 8]["pre"] += [("wl", ("q", 1, 2))]
    if opt.stamp != 3:
        at(V0 + 95, [("stamp", "endA")])
    TB = [rmB.S[1] + 4*k for k in range(4)] + [rmB.S[2] + 4*k for k in range(4)] + [rmB.S[3] + 4*k for k in range(4)]
    tail = []
    if opt.dtmajor:
        c2 = V1 + 79; c1 = V1 + 87
    else:
        c2 = V1 + 87; c1 = V1 + 91
    o2, q2 = ep_scale(1, 2); o1, q1 = ep_scale(1, 1); o0, q0 = ep_scale(1, 0)
    A2 = interleave_writes(o2, q2, 1, 2)
    R2 = [ep_rd(1, 2, i, TB[i]) for i in range(4)]
    S2 = sum([ep_st(1, 2, i, TB[i]) for i in range(4)], [])
    W1 = sum(ep_write(1, 1, q1), [])
    R1 = [ep_rd(1, 1, i, TB[4+i]) for i in range(4)]
    S1 = sum([ep_st(1, 1, i, TB[4+i]) for i in range(4)], [])
    W0 = sum(ep_write(1, 0, q0), [])
    R0 = [ep_rd(1, 0, i, TB[8+i]) for i in range(4)]
    S0 = sum([ep_st(1, 0, i, TB[8+i]) for i in range(4)], [])
    if opt.dtmajor:
        spread(A2, c2 + 4, c2 + 13)
        at(c2 + 13, R2)
        spread(o1[:24], c1 + 4, V1 + 96)
        tail = o1[24:] + W1 + S2 + R1 + o0 + W0 + S1 + R0 + S0
    else:
        k = len(A2) // 2
        spread(A2[:k], c2 + 4, V1 + 96)
        tail = A2[k:] + R2 + o1 + W1 + S2 + R1 + o0 + W0 + S1 + R0 + S0
    def fmt(s, i):
        fr = FR + 4 * (i % NF)
        return s.format(fr=fr, fr1=fr + 1, fr2=fr + 2, fr3=fr + 3)
    def issue_reads(j):
        it = items[j]
        if j == 0 or items[j - 1]["tile"] != it["tile"]:
            sync(it["tile"])
            set_ab(it["tile"])
        for r in it["reads"]:
            if opt.memonly == 2:
                g.lg_issue(("f", j)); g.lg.pop(); g.lg.append(("f", j)); continue
            e(fmt(r, j)); g.lg_issue(("f", j))
    st["initems"] = True
    sync(0)
    for i in range(4): q_dma(0, 1, i, S_ZB)
    q_rd(0, 0, S_STG, 176)
    set_ab(0)
    first_done = True
    for j in range(NF - 1):
        for r in items[j]["reads"]:
            e(fmt(r, j)); g.lg_issue(("f", j))
    items[0]["pre"] = [("wl", ("q", 0, 0))] + items[0]["pre"]
    st["initems"] = True
    last_dma = opt.k1_at - opt.dmagap
    for i, it in enumerate(items):
        if opt.prio and i % 6 == 0:
            ph = (i + NF - 1) % 24
            if ph < 6:
                pass
        if opt.prio:
            ph = (i + NF - 1) % 24
            if ph % 6 == 0:
                e(f"s_setprio {3 - ph // 6}")
        st["cur_item"] = i
        for (qn, qi) in list(st["qdone"]):
            if i >= qi:
                st["done"].append(qn); st["qdone"].remove((qn, qi))
        if not opt.memonly:
            for op in it["pre"]: emit_op(op)
        e(f"s_waitcnt lgkmcnt({g.lg_wait(('f', i))})")
        if not opt.memonly:
            e(fmt(it["mfma"], i))
        if i + 1 == NI or items[i + 1]["tile"] != it["tile"]:
            st["done"].append(it["tile"])
        j = i + NF - 1
        if j < NI: issue_reads(j)
        if pend and i - last_dma >= opt.dmagap:
            emit_dma(); last_dma = i
        for op in it["post"]:
            if opt.memonly and (isinstance(op, str) or op[0] == "v"):
                if isinstance(op, str) and ("mbcnt" in op or "u32" in op or "v_and" in op or "v_lshr" in op):
                    emit_op(op)
                continue
            emit_op(op)
    assert not pend
    stamp("mfma_done")
    for op in tail:
        if opt.memonly and op[0] == "v": continue
        emit_op(op)
    if opt.stamp != 3: stamp("ep_done")
    if opt.padto:
        e("s_waitcnt vmcnt(0)")
        g.label("L_spin")
        e("s_sleep 2")
        e("s_memrealtime s[50:51]")
        e("s_waitcnt lgkmcnt(0)")
        e("s_sub_u32 s52, s50, s48")
        e(f"s_cmp_lt_u32 s52, {opt.padto}")
        e("s_cbranch_scc1 L_spin")
    if opt.stamp:
        e("s_waitcnt vmcnt(0)")
        stamp("end")
        e("s_memtime s[46:47]")
        e("s_waitcnt lgkmcnt(0)")
        e("s_mov_b32 s42, 0x10000000")
        e("s_mov_b32 s43, 0x00020000")
        e("s_lshl_b32 s33, s2, 3")
        e(f"s_add_u32 s33, s33, s{S_W}")
        e("s_lshl_b32 s33, s33, 8")
        e("v_mov_b32 v1, 0")
        for i in range(len(stamps)):
            e(f"v_mov_b32 v0, s{48+2*i}")
            e(f"buffer_store_dword v0, v1, s[40:43], s33 offen offset:{4*i}")
        e("s_sub_u32 s46, s46, s44")
        e("v_mov_b32 v0, s46")
        e(f"buffer_store_dword v0, v1, s[40:43], s33 offen offset:{4*len(stamps)}")
        print("nstamps", len(stamps), "stamps:", " ".join(stamps), file=sys.stderr)
        assert 48 + 2 * len(stamps) <= 102
    g.label("L_end")
    e("s_endpgm")

    out = HEADER
    out += f"; @launch grid=(256,1,1) block=(512,1,1) lds={LDS_BYTES}\n"
    out += '.amdgcn_target "amdgcn-amd-amdhsa--gfx950"\n.text\n'
    out += f".globl {NAME}\n.p2align 8\n.type {NAME},@function\n{NAME}:\n"
    out += "\n".join(g.L) + "\n"
    out += f""".section .rodata,"a"
.p2align 6
.amdhsa_kernel {NAME}
  .amdhsa_next_free_vgpr 256
  .amdhsa_next_free_sgpr {102 if (opt.stamp or opt.padto or opt.rot) else 48}
  .amdhsa_accum_offset 256
  .amdhsa_group_segment_fixed_size 0
  .amdhsa_kernarg_size 48
  .amdhsa_user_sgpr_count 2
  .amdhsa_user_sgpr_kernarg_segment_ptr 1
  .amdhsa_system_sgpr_workgroup_id_x 1
.end_amdhsa_kernel
"""
    return out

if __name__ == "__main__":
    ap = argparse.ArgumentParser()
    ap.add_argument("-o", default="standalone__mha_softmax__near_ridge.s")
    ap.add_argument("--nslot", type=int, default=4)
    ap.add_argument("--nf", type=int, default=4)
    ap.add_argument("--look", type=int, default=2)
    ap.add_argument("--pro", type=int, default=3)
    ap.add_argument("--fl_q", default="")
    ap.add_argument("--fl_k", default="")
    ap.add_argument("--fl_v", default="")
    ap.add_argument("--fl_o", default="")
    ap.add_argument("--headmap", type=int, default=0)
    ap.add_argument("--stamp", type=int, default=0)
    ap.add_argument("--dmagap", type=int, default=3)
    ap.add_argument("--prio", type=int, default=0)
    ap.add_argument("--memonly", type=int, default=0)
    ap.add_argument("--fl_oa", default=None)
    ap.add_argument("--fl_ob", default=None)
    ap.add_argument("--wbl2", type=int, default=0)
    ap.add_argument("--wbl2_at", type=int, default=3)
    ap.add_argument("--fakemem", type=int, default=0)
    ap.add_argument("--badstg", type=int, default=0)
    ap.add_argument("--nowait", type=int, default=0)
    ap.add_argument("--stampdma", type=int, default=0)
    ap.add_argument("--rot", type=int, default=0)
    ap.add_argument("--skip_o", type=lambda x: [int(c) for c in x], default=None)
    ap.add_argument("--nobar", type=int, default=0)
    ap.add_argument("--dtmajor", type=int, default=1)
    ap.add_argument("--korder", default="u")
    ap.add_argument("--qc2_at", type=int, default=84)
    ap.add_argument("--k1_at", type=int, default=6)
    ap.add_argument("--padto", type=int, default=0)
    opt = ap.parse_args()
    open(opt.o, "w").write(build(opt))
```

```python
import sys, math, struct, argparse

HEADER = """; Kernarg layout for this problem (48 bytes, ptrs only, base s[0:1]):
;   offset   0: d_in[0] q  shape=(16, 32, 256, 192) dtype=bfloat16 strides=(3145728, 98304, 384, 2) contiguous=True
;   offset   8: d_in[1] k  shape=(16, 32, 256, 192) dtype=bfloat16 strides=(3145728, 98304, 384, 2) contiguous=True
;   offset  16: d_in[2] v  shape=(16, 32, 256, 192) dtype=bfloat16 strides=(3145728, 98304, 384, 2) contiguous=True
"""
NAME = "standalone__mha_softmax__near_ridge_kernel"
HEAD_BYTES = 256 * 384
TILE_BYTES = 64 * 384
TOTAL_BYTES = 512 * HEAD_BYTES
STG_PITCH = 128
STG_WAVE = 32 * STG_PITCH
ZB_SLOT = 4 * TILE_BYTES
STG0 = 5 * TILE_BYTES
SPARE0 = STG0 + 8 * STG_WAVE
LDS_BYTES = SPARE0 + 2 * STG_WAVE
ZC0 = 2 * TILE_BYTES
S_ZB = 4
S_QW = 5
S_X0, S_X1 = 6, 7
S_ZC = 8
S_T2 = 9

def f32bits(x):
    return struct.unpack("<I", struct.pack("<f", x))[0]

FR = 224
SWR, SRR, SOR, INVR = 240, 241, 242, 243
VD = 244
AB = 245
KB0 = 249
NF_ = 250
VB0 = 251
VL = 252
VT0, VT1 = 254, 255
SRD_Q, SRD_K, SRD_V, SRD_O = 12, 16, 20, 24
S_W1024 = 28
S_HEAD = [29, 30]
S_TOFF = 31
S_NC = 32
S_WH = 34
S_U = 35
S_STG = 36
S_SO = 37
S_ST = 38
S_OB = [39, 33]
S_W = 3

class RM:
    def __init__(self, S, Q, O, MT):
        self.S = [16 * b for b in S]
        self.Q = [16 * b for b in Q]
        self.O = [16 * b for b in O]
        self.MT = 16 * MT
        s0 = self.S[0]
        self.F = {1: s0 + 4, 2: s0 + 5, 3: s0 + 6, 4: s0 + 7, 5: VT1}
        self.QA = s0
        self.SW, self.SR, self.SO, self.INV = SWR, SRR, SOR, INVR
    def q(self, s):
        return self.Q[s // 4] + 4 * (s % 4)
    def half(self, H):
        return self.S[H >> 1] + 8 * (H & 1)
RMS = [RM([0,1,2,3,4,5,6,7], [8,9,10], [8,9,10,11,12,13], 13),
       RM([4,5,6,7,0,8,9,10], [1,2,3], [1,2,3,11,12,13], 13)]

class Gen:
    def __init__(self):
        self.L = []; self.vm = []; self.lg = []
    def e(self, s): self.L.append("    " + s)
    def c(self, s): self.L.append("    ; " + s)
    def label(self, s): self.L.append(s + ":")
    def vm_issue(self, tag): self.vm.append(tag)
    def vm_wait(self, tags):
        last = -1
        for i, t in enumerate(self.vm):
            if t in tags: last = i
        assert last >= 0, tags
        return min(63, len(self.vm) - 1 - last)
    def lg_issue(self, tag): self.lg.append(tag)
    def lg_wait(self, tag):
        last = -1
        for i, t in enumerate(self.lg):
            if t == tag: last = i
        assert last >= 0, tag
        return min(15, len(self.lg) - 1 - last)

def build(opt):
    g = Gen(); e = g.e
    NS, NF, LOOK = opt.nslot, opt.nf, opt.look
    assert FR + 4 * NF <= SWR
    assert NS == 4 and LDS_BYTES == 163840
    fl = {"Q": opt.fl_q, "K": opt.fl_k, "V": opt.fl_v, "O": opt.fl_o}
    fl["O0"] = opt.fl_o if opt.fl_oa is None else opt.fl_oa
    fl["O1"] = opt.fl_o if opt.fl_ob is None else opt.fl_ob
    fl = {k: ((" " + v.replace("+", " ")) if v else "") for k, v in fl.items()}
    c = (192 ** -0.5) * math.log2(math.e)
    CLIT = f"0x{f32bits(c):08x}"
    stamps = []
    def stamp(name):
        if not opt.stamp: return
        if opt.stamp == 3:
            i = len(stamps); stamps.append(name + "_t"); stamps.append(name + "_c")
            e(f"s_memrealtime s[{48+2*i}:{49+2*i}]")
            e(f"s_memtime s[{50+2*i}:{51+2*i}]")
            return
        i = len(stamps); stamps.append(name)
        e(f"{'s_memtime' if opt.stamp == 2 else 's_memrealtime'} s[{48+2*i}:{49+2*i}]")

    tiles = [(0, "K", j) for j in range(4)] + [(0, "V", j) for j in range(4)] + \
            [(1, "K", j) for j in range(4)] + [(1, "V", j) for j in range(4)]
    tid = {t: i for i, t in enumerate(tiles)}
    NT = len(tiles)
    st = dict(issued=0, free=[0, 1, 2, 3], slot={}, done=[], released=set(), synced=-1, qdone=[], cur_item=0)

    e("s_cmp_ge_u32 s2, 256")
    e("s_cbranch_scc1 L_end")
    if opt.stamp:
        e("s_memtime s[44:45]")
        e("s_load_dwordx2 s[40:41], s[0:1], 40")
    stamp("start")
    if opt.padto:
        e("s_memrealtime s[48:49]")
    e("s_load_dwordx4 s[4:7], s[0:1], 0")
    e("s_load_dwordx4 s[8:11], s[0:1], 16")
    e("v_lshrrev_b32 v1, 6, v0")
    e("v_and_b32 v2, 63, v0")
    e(f"v_readfirstlane_b32 s{S_W}, v1")
    e("v_and_b32 v3, 31, v2")
    e("v_lshrrev_b32 v4, 5, v2")
    e("v_lshrrev_b32 v5, 3, v2")
    e("v_lshl_add_u32 v5, v1, 3, v5")
    e("v_bfe_u32 v6, v2, 4, 1")
    e("v_lshlrev_b32 v6, 2, v6")
    e("v_lshl_or_b32 v6, v4, 1, v6")
    e("v_and_b32 v7, 1, v1")
    e("v_or_b32 v6, v6, v7")
    e("v_and_b32 v7, 7, v2")
    e("v_xor_b32 v6, v6, v7")
    e("v_mul_u32_u24 v5, 384, v5")
    e(f"v_lshl_add_u32 v{VD}, v6, 4, v5")
    e(f"s_lshl_b32 s{S_W1024}, s{S_W}, 10")
    if opt.headmap == 0:
        e(f"s_mul_i32 s{S_HEAD[0]}, s2, {HEAD_BYTES}")
        e(f"s_add_u32 s{S_HEAD[1]}, s{S_HEAD[0]}, {256*HEAD_BYTES}")
    else:
        e(f"s_mul_i32 s{S_HEAD[0]}, s2, {2*HEAD_BYTES}")
        e(f"s_add_u32 s{S_HEAD[1]}, s{S_HEAD[0]}, {HEAD_BYTES}")
    if opt.fakemem:
        e(f"s_and_b32 s{S_HEAD[0]}, s2, 7")
        e(f"s_mul_i32 s{S_HEAD[0]}, s{S_HEAD[0]}, {HEAD_BYTES}")
        e(f"s_mov_b32 s{S_HEAD[1]}, s{S_HEAD[0]}")
    if opt.rot:
        if opt.rot == 1:
            e("s_and_b32 s90, s2, 3")
        elif opt.rot == 2:
            e("s_lshr_b32 s90, s2, 3")
            e("s_and_b32 s90, s90, 3")
        elif opt.rot == 3:
            e("s_lshr_b32 s90, s2, 3")
            e("s_add_u32 s90, s90, s2")
            e("s_and_b32 s90, s90, 3")
        for t in range(4):
            e(f"s_add_u32 s{96+t}, s90, {t}")
            e(f"s_and_b32 s{96+t}, s{96+t}, 3")
            e(f"s_mul_i32 s{92+t}, s{96+t}, {TILE_BYTES}")
    e("s_waitcnt lgkmcnt(0)")
    for srd, sp in ((SRD_Q, 4), (SRD_K, 6), (SRD_V, 8), (SRD_O, 10)):
        e(f"s_mov_b32 s{srd}, s{sp}")
        e(f"s_mov_b32 s{srd+1}, s{sp+1}")
        e(f"s_mov_b32 s{srd+2}, {TOTAL_BYTES}")
        e(f"s_mov_b32 s{srd+3}, 0x00020000")

    e(f"s_lshl_b32 s{S_T2}, s{S_W}, 12")
    e(f"s_add_u32 s{S_STG}, s{S_T2}, {STG0}")
    e(f"s_add_u32 s{S_ZB}, s{S_T2}, {ZB_SLOT}")
    e(f"s_add_u32 s{S_T2}, s{S_T2}, {SPARE0 - 6*STG_WAVE}")
    e(f"s_cmp_ge_u32 s{S_W}, 6")
    e(f"s_cselect_b32 s{S_ZB}, s{S_T2}, s{S_ZB}")
    e(f"s_mul_i32 s{S_QW}, s{S_W}, {24*384}")
    e(f"s_and_b32 s{S_X0}, s{S_W}, 1")
    e(f"s_lshl_b32 s{S_X0}, s{S_X0}, 4")
    e(f"s_xor_b32 s{S_X1}, s{S_X0}, 16")
    def q_dma(h, c, i, zone):
        e(f"v_xor_b32 v{VT0}, s{S_X0 if i % 2 == 0 else S_X1}, v{VD}")
        e(f"s_add_u32 m0, s{zone}, {i*1024}")
        e(f"s_add_u32 s{S_TOFF}, s{S_HEAD[h]}, s{S_QW}")
        e(f"s_add_u32 s{S_TOFF}, s{S_TOFF}, {i*3072 + c*128}")
        e(f"buffer_load_dwordx4 v{VT0}, s[{SRD_Q}:{SRD_Q+3}], s{S_TOFF} offen{fl['Q']} lds")
        g.vm_issue(("Qd", h, c))
    def q_rd(h, c, zone, r0):
        rm = RMS[h]
        e(f"s_waitcnt vmcnt({g.vm_wait([('Qd', h, c)])})")
        e(f"v_add_u32 v{r0}, s{zone}, v{KB0}")
        for j in range(1, 4):
            e(f"v_xor_b32 v{r0+j}, {32*j}, v{r0}")
        for j in range(4):
            sidx = 4 * c + j
            e(f"ds_read_b128 v[{rm.q(sidx)}:{rm.q(sidx)+3}], v{r0+j}")
            g.lg_issue(("q", h, c))
    pend = []
    def emit_dma():
        n, b = pend.pop(0)
        h, kind, t = tiles[n]
        slot = st["slot"][n]
        srd = {"Q": SRD_Q, "K": SRD_K, "V": SRD_V}[kind]
        e(f"s_add_u32 m0, s{S_W1024}, {slot*TILE_BYTES + b*8064}")
        if opt.rot:
            e(f"s_add_u32 s{S_TOFF}, s{S_HEAD[h]}, s{92+t}")
        else:
            e(f"s_add_u32 s{S_TOFF}, s{S_HEAD[h]}, {t*TILE_BYTES}")
        e(f"buffer_load_dwordx4 v{VD}, s[{srd}:{srd+3}], s{S_TOFF} offen offset:{128*b}{fl[kind]} lds")
        g.vm_issue(("T", n))
    def issue_next(now=True):
        n = st["issued"]
        slot = st["free"].pop(0)
        st["slot"][n] = slot
        st["issued"] += 1
        for b in range(3):
            pend.append((n, b))
        if now:
            while pend: emit_dma()
    def sync(n):
        assert n == st["synced"] + 1, (n, st["synced"])
        assert n < st["issued"], f"tile {n} not issued before its sync"
        st["synced"] = n
        h, kind, t = tiles[n]
        while any(p[0] <= n for p in pend):
            emit_dma()
        g.c(f"---- sync tile {n} ({kind}{t} head {h})")
        if not opt.nowait:
            e(f"s_waitcnt vmcnt({g.vm_wait([('T', n)])})")
        if not (opt.nobar and st.get("initems")):
            e("s_barrier")
        if opt.stamp and (h, kind, t) in STAMP_AT:
            stamp(f"{kind}{t}{'AB'[h]}")
        if opt.wbl2 and (h, kind, t) == (1, "V", opt.wbl2_at):
            assert opt.wbl2_at == 3
            e(f"s_cmp_lt_u32 s2, {8*opt.wbl2}")
            e("s_cbranch_scc0 L_nowb")
            e(f"s_cmp_eq_u32 s{S_W}, 0")
            e("s_cbranch_scc0 L_nowb")
            e("buffer_wbl2 sc1")
            g.label("L_nowb")
        for d in st["done"]:
            if d not in st["released"]:
                st["released"].add(d)
                if d == "ZC": st["free"] += [2, 3]
                else: st["free"].append(st["slot"][d])
        lk = LOOK
        if opt.looks:
            lk = int(opt.looks[n])
        while st["issued"] < NT and st["free"] and st["issued"] - (n + 1) < lk:
            issue_next(now=(opt.dmagap == 0 or not st.get("initems")))
        if opt.stamp and opt.stampdma and (h, kind, t) in STAMP_AT:
            stamp(f"d{kind}{t}{'AB'[h]}")
    if opt.stamp == 3:
        STAMP_AT = {(0,"K",0),(0,"V",0),(0,"V",2),(1,"K",0),(1,"K",2),(1,"V",0)}
    elif opt.stampdma:
        STAMP_AT = {(0,"K",1),(0,"K",2),(0,"V",1),(0,"V",3),(1,"Q",3),(1,"K",0),(1,"K",1),(1,"K",2),(1,"K",3),(1,"V",0)}
    else:
      STAMP_AT = {(0,"Q",0),(0,"K",0),(0,"K",1),(0,"K",3),(0,"V",0),(0,"V",1),(0,"V",2),(0,"V",3),(1,"K",0),(1,"K",1),(1,"K",3),(1,"V",0),(1,"V",1),(1,"V",3)}

    issue_next()
    for i in range(4): q_dma(0, 0, i, S_STG)

    e("v_bfe_u32 v5, v3, 1, 1")
    e("v_lshlrev_b32 v5, 2, v5")
    e("v_bfe_u32 v6, v3, 2, 1")
    e("v_lshl_or_b32 v5, v6, 1, v5")
    e("v_bfe_u32 v6, v3, 3, 1")
    e("v_or_b32 v5, v5, v6")
    e("v_xor_b32 v5, v5, v4")
    e("v_lshlrev_b32 v5, 4, v5")
    e(f"v_lshl_add_u32 v{KB0}, v3, 7, v5")
    e("v_bfe_u32 v5, v2, 2, 2")
    e("v_lshl_add_u32 v6, v4, 2, v5")
    e("v_lshlrev_b32 v6, 7, v6")
    e("v_bfe_u32 v7, v2, 4, 1")
    e("v_lshlrev_b32 v7, 1, v7")
    e("v_bfe_u32 v8, v2, 1, 1")
    e("v_or_b32 v7, v7, v8")
    e("v_bfe_u32 v8, v2, 3, 1")
    e("v_lshlrev_b32 v8, 2, v8")
    e("v_lshl_or_b32 v8, v4, 1, v8")
    e("v_xor_b32 v7, v7, v8")
    e("v_lshl_add_u32 v6, v7, 4, v6")
    e("v_and_b32 v7, 1, v2")
    e(f"v_lshl_add_u32 v{VB0}, v7, 3, v6")
    e(f"s_mov_b32 s{S_NC}, 0x{f32bits(-c):08x}")
    e(f"s_mul_i32 s{S_SO}, s{S_W}, {32*384}")
    e(f"s_add_u32 s{S_OB[0]}, s{S_HEAD[0]}, s{S_SO}")
    e(f"s_add_u32 s{S_OB[1]}, s{S_HEAD[1]}, s{S_SO}")
    e("v_and_b32 v5, 7, v3")
    e(f"v_lshlrev_b32 v{SWR}, 7, v3")
    e(f"v_lshl_add_u32 v{SWR}, v5, 4, v{SWR}")
    e(f"v_lshl_add_u32 v{SWR}, v4, 3, v{SWR}")
    e(f"v_add_u32 v{SWR}, s{S_STG}, v{SWR}")
    e(f"v_lshlrev_b32 v{SRR}, 4, v2")
    e(f"v_add_u32 v{SRR}, s{S_STG}, v{SRR}")
    e("v_lshrrev_b32 v5, 3, v2")
    e("v_and_b32 v6, 7, v2")
    e("v_xor_b32 v6, v6, v5")
    e(f"v_mul_u32_u24 v{SOR}, 384, v5")
    e(f"v_lshl_add_u32 v{SOR}, v6, 4, v{SOR}")
    if opt.stamp != 3: stamp("issued")

    def set_ab(n, r0=AB):
        h, kind, t = tiles[n]
        base = st["slot"][n] * TILE_BYTES
        if kind == "V":
            e(f"v_add_u32 v{r0}, {base}, v{VB0}")
            e(f"v_xor_b32 v{r0+1}, 16, v{r0}")
            e(f"v_xor_b32 v{r0+2}, 64, v{r0}")
            e(f"v_xor_b32 v{r0+3}, 0x50, v{r0}")
        else:
            e(f"v_add_u32 v{r0}, {base}, v{KB0}")
            if kind == "Q":
                e(f"v_add_u32 v{r0}, s{S_U}, v{r0}")
            for j in range(1, 4):
                e(f"v_xor_b32 v{r0+j}, {32*j}, v{r0}")

    lblc = [0]
    def q_read(n, r0):
        h, kind, j = tiles[n]
        rm = RMS[h]
        lblc[0] += 1
        lab = f"L_q{lblc[0]}"
        if opt.rot:
            e(f"s_cmp_eq_u32 s{S_WH}, s{96+j}")
        else:
            e(f"s_cmp_eq_u32 s{S_WH}, {j}")
        e(f"s_cbranch_scc0 {lab}")
        set_ab(n, r0)
        for s in range(12):
            e(f"ds_read_b128 v[{rm.q(s)}:{rm.q(s)+3}], v{r0 + (s & 3)} offset:{(s >> 2)*8192}")
        if not st.get("initems"):
            e("s_waitcnt lgkmcnt(0)")
            g.label(lab)
            st["done"].append(n)
        else:
            g.label(lab)
            st["qdone"].append((n, st["cur_item"] + NF + 1))

    def max_tile(rm, T):
        b = rm.S[T]; m = rm.MT + T
        out = [f"v_max3_f32 v{m}, v{b}, v{b+1}, v{b+2}"]
        for k in range(6):
            out.append(f"v_max3_f32 v{m}, v{m}, v{b+3+2*k}, v{b+4+2*k}")
        out.append(f"v_max_f32 v{m}, v{m}, v{b+15}")
        out.append(f"v_mul_f32 v{m}, s{S_NC}, v{m}")
        return out
    def exp_ops(rm, T, nreg):
        b = rm.S[T]
        Fm = lambda i: f"v_fmamk_f32 v{b+i}, v{b+i}, {CLIT}, v{nreg}"
        Ex = lambda i: f"v_exp_f32 v{b+i}, v{b+i}"
        out = [Fm(0), Fm(1)]
        for i in range(16):
            out.append(Ex(i))
            if i + 2 < 16: out.append(Fm(i + 2))
        return out
    def prod_half(rm, H, first=False):
        b = rm.half(H); T = H >> 1
        out = []
        if T <= 5:
            fr = rm.F[T] if T >= 1 else VT0
            for i in range(8):
                out.append(f"v_mul_f32 v{b+i}, v{fr}, v{b+i}")
        adds = []
        for i in range(8):
            if first and i < 2:
                adds.append(f"v_mov_b32 v{VL+i}, v{b+i}")
            else:
                adds.append(f"v_add_f32 v{VL+(i&1)}, v{VL+(i&1)}, v{b+i}")
        cv = [f"v_cvt_pk_bf16_f32 v{b+j}, v{b+2*j}, v{b+2*j+1}" for j in range(4)]
        for j in range(4):
            out += [adds[2*j], adds[2*j+1], cv[j]]
        return out
    def sm_head(rm):
        m = rm.MT
        out = ["s_nop 7", "s_nop 3"]
        out += max_tile(rm, 7)
        out += [f"v_min3_f32 v{NF_}, v{m}, v{m+1}, v{m+2}",
                f"v_min3_f32 v{NF_}, v{NF_}, v{m+3}, v{m+4}",
                f"v_min3_f32 v{NF_}, v{NF_}, v{m+5}, v{m+6}",
                f"v_min_f32 v{NF_}, v{NF_}, v{m+7}",
                f"v_mov_b32 v{VT0}, v{NF_}", "s_nop 1",
                f"v_permlane32_swap_b32 v{NF_}, v{VT0}", "s_nop 1",
                f"v_min_f32 v{NF_}, v{NF_}, v{VT0}",
                f"v_sub_f32 v{VT0}, v{NF_}, v{m}",
                f"v_exp_f32 v{VT0}, v{VT0}",
                f"v_sub_f32 v{m+5}, v{NF_}, v{m+5}"]
        out += prod_half(rm, 0, first=True)
        out += [f"v_exp_f32 v{rm.F[5]}, v{m+5}"]
        for T in range(1, 5):
            out.append(f"v_sub_f32 v{rm.F[T]}, v{NF_}, v{m+T}")
        for T in range(1, 5):
            out.append(f"v_exp_f32 v{rm.F[T]}, v{rm.F[T]}")
        out.append("s_nop 0")
        return out
    def inv_l(rm):
        return [f"v_add_f32 v{VL}, v{VL}, v{VL+1}",
                f"v_mov_b32 v{VT0}, v{VL}", "s_nop 1",
                f"v_permlane32_swap_b32 v{VL}, v{VT0}", "s_nop 1",
                f"v_add_f32 v{VL}, v{VL}, v{VT0}",
                f"v_rcp_f32 v{rm.INV}, v{VL}"]
    def ep_addr(rm):
        SW, SR, SO = rm.SW, rm.SR, rm.SO
        return [f"v_mbcnt_lo_u32_b32 v{VT0}, -1, 0",
                f"v_mbcnt_hi_u32_b32 v{VT0}, -1, v{VT0}",
                f"v_and_b32 v{SR}, 31, v{VT0}",
                f"v_mul_u32_u24 v{SW}, {STG_PITCH}, v{SR}",
                f"v_lshrrev_b32 v{SR}, 5, v{VT0}",
                f"v_lshl_add_u32 v{SW}, v{SR}, 3, v{SW}",
                f"v_add_u32 v{SW}, s{S_STG}, v{SW}",
                f"v_lshrrev_b32 v{SO}, 3, v{VT0}",
                f"v_mul_u32_u24 v{SR}, {STG_PITCH}, v{SO}",
                f"v_and_b32 v{VT0}, 7, v{VT0}",
                f"v_lshl_add_u32 v{SR}, v{VT0}, 4, v{SR}",
                f"v_add_u32 v{SR}, s{S_STG}, v{SR}",
                f"v_mul_u32_u24 v{SO}, 384, v{SO}",
                f"v_lshl_add_u32 v{SO}, v{VT0}, 4, v{SO}"]
    def ep_scale(h, b, dest=None):
        rm = RMS[h]
        ops = []; pairs = []
        for dd in range(2):
            R = rm.O[2*b + dd]
            for gq in range(4):
                B = R + 4 * gq
                D = B if dest is None else dest + 2 * (4*dd + gq)
                for i in range(4):
                    ops.append(("v", f"v_mul_f32 v{B+i}, v{rm.INV}, v{B+i}"))
                ops.append(("v", f"v_cvt_pk_bf16_f32 v{D}, v{B}, v{B+1}"))
                ops.append(("v", f"v_cvt_pk_bf16_f32 v{D+1}, v{B+2}, v{B+3}"))
                pairs.append(D)
        return ops, pairs
    def ep_write(h, b, pairs, off=0):
        out = []
        for k, D in enumerate(pairs):
            if k == 0:
                out.append([("dsw", f"ds_write_b64 v{SWR}, v[{D}:{D+1}]", ("ow", h, b))])
            else:
                out.append([("v", f"v_xor_b32 v{VT0}, {16*k}, v{SWR}"),
                            ("dsw", f"ds_write_b64 v{VT0}, v[{D}:{D+1}]", ("ow", h, b))])
        return out
    def ep_rd(h, b, i, T, off=0):
        return ("dsr", f"ds_read_b128 v[{T}:{T+3}], v{SRR} offset:{off + i*1024}", ("or", h, b, i))
    def ep_st(h, b, i, T):
        return [("wl", ("or", h, b, i)),
                ("s", f"s_add_u32 s{S_ST}, s{S_OB[h]}, {3072*i}"),
                ("st", f"buffer_store_dwordx4 v[{T}:{T+3}], v{SOR}, s[{SRD_O}:{SRD_O+3}], s{S_ST} offen offset:{128*b}{fl['O%d' % h]}", ("O", h))]
    def interleave_writes(ops, pairs, h, b, off=0):
        out = []
        w = ep_write(h, b, pairs, off)
        for k in range(8):
            out += ops[6*k:6*k+6] + w[k]
        return out
    def emit_op(op):
        if isinstance(op, str):
            e(op); return
        k = op[0]
        if k in ("v", "s"): e(op[1])
        elif k in ("dsw", "dsr"): e(op[1]); g.lg_issue(op[2])
        elif k == "wl": e(f"s_waitcnt lgkmcnt({g.lg_wait(op[1])})")
        elif k == "st":
            if opt.skip_o is not None and op[2][1] in opt.skip_o: return
            e(op[1]); g.vm_issue(op[2])
        elif k == "sync": sync(op[1])
        elif k == "qdma": q_dma(op[1], op[2], op[3], op[4])
        elif k == "qrd": q_rd(op[1], op[2], op[3], op[4])
        elif k == "rel": st["done"].append(op[1])
        elif k == "stamp": stamp(op[1])
        else: raise ValueError(op)

    items = []
    def spread(ops, lo, hi):
        n = hi - lo
        assert n > 0
        for k, op in enumerate(ops):
            idx = lo + (k * n) // len(ops)
            if k > 0 and isinstance(op, tuple) and op[0] == "dsw" and f"v{VT0}," in op[1]:
                idx = last_idx
            items[idx]["post"].append(op)
            last_idx = idx

    base = {}
    for h in range(2):
        rm = RMS[h]
        base[(h, "K")] = len(items)
        for t in range(4):
            n = tid[(h, "K", t)]
            korder = [(u, s) for u in range(2) for s in range(12)]
            if h == 0 and t == 0:
                korder = [(u, s) for cb in range(3) for u in range(2) for s in range(4*cb, 4*cb+4)]
            for u, s in korder:
                if True:
                    d = rm.S[2 * t + u]
                    items.append(dict(tile=n,
                        reads=[f"ds_read_b128 v[{{fr}}:{{fr3}}], v{AB + (s & 3)} offset:{(s >> 2)*8192 + u*4096}"],
                        mfma=f"v_mfma_f32_32x32x16_bf16 v[{d}:{d+15}], v[{{fr}}:{{fr3}}], v[{rm.q(s)}:{rm.q(s)+3}], " + ("0" if s == 0 else f"v[{d}:{d+15}]"),
                        pre=[], post=[]))
        base[(h, "V")] = len(items)
        for t in range(4):
            n = tid[(h, "V", t)]
            if t < 3:
                order = [(ks, dt) for ks in range(4) for dt in range(6)]
            elif h == 1 and opt.dtmajor:
                order = [(ks, dt) for b in (2, 1, 0) for dt in (2*b, 2*b+1) for ks in range(4)]
            else:
                order = [(ks, dt) for ks in range(2) for dt in range(6)] + \
                        [(ks, dt) for b in (2, 1, 0) for dt in (2*b, 2*b+1) for ks in (2, 3)]
            for ks, dt in order:
                d = rm.O[dt]
                H = 4 * t + ks
                pk = rm.half(H)
                first = (t == 0 and ks == 0)
                items.append(dict(tile=n,
                    reads=[f"ds_read_b64_tr_b16 v[{{fr}}:{{fr1}}], v{AB + 2*(dt & 1)} offset:{(dt >> 1)*8192 + ks*2048}",
                           f"ds_read_b64_tr_b16 v[{{fr2}}:{{fr3}}], v{AB + 2*(dt & 1) + 1} offset:{(dt >> 1)*8192 + ks*2048 + 1024}"],
                    mfma=f"v_mfma_f32_32x32x16_bf16 v[{d}:{d+15}], v[{{fr}}:{{fr3}}], v[{pk}:{pk+3}], " + ("0" if first else f"v[{d}:{d+15}]"),
                    pre=[], post=[]))
    NI = len(items)
    for h in range(2):
        rm = RMS[h]
        K0 = base[(h, "K")]; V0 = base[(h, "V")]
        comp = [12 * T + 11 for T in range(8)]
        if h == 0:
            comp[0] = 19; comp[1] = 23
        for T in range(7):
            lo = K0 + comp[T] + 5
            spread(max_tile(rm, T), lo, lo + 4)
        for T in range(6):
            lo = K0 + comp[T] + 9
            spread(exp_ops(rm, T, rm.MT + T), lo, lo + 12)
        items[V0]["pre"] += sm_head(rm)
        for H in range(1, 12):
            spread(prod_half(rm, H), V0 + 6*(H-1), V0 + 6*H - 1)
        e6 = exp_ops(rm, 6, NF_); e7 = exp_ops(rm, 7, NF_)
        if h == 1 and opt.dtmajor:
            spread(e6, V0 + 0, V0 + 48)
            spread(e7, V0 + 6, V0 + 56)
        else:
            spread(e6, V0 + 0, V0 + 58)
            spread(e7, V0 + 6, V0 + 64)
    def at(idx, ops):
        items[idx]["post"] += ops
    def spread_groups(groups, lo, hi):
        n = hi - lo
        for k, grp in enumerate(groups):
            items[lo + (k * n) // len(groups)]["post"] += grp
    for h in range(2):
        rm = RMS[h]
        V0 = base[(h, "V")]
        if h == 0 or not opt.dtmajor:
            spread(prod_half(rm, 12), V0 + 66, V0 + 71)
            spread(prod_half(rm, 13), V0 + 72, V0 + 77)
            spread(prod_half(rm, 14), V0 + 72, V0 + 83)
            spread(prod_half(rm, 15), V0 + 73, V0 + 83)
            at(V0 + 84, inv_l(rm))
        else:
            spread(prod_half(rm, 12), V0 + 52, V0 + 62)
            spread(prod_half(rm, 13), V0 + 56, V0 + 66)
            spread(prod_half(rm, 14), V0 + 60, V0 + 70)
            spread(prod_half(rm, 15), V0 + 62, V0 + 71)
            at(V0 + 72, inv_l(rm))
    rmA, rmB = RMS
    V0 = base[(0, "V")]; K1 = base[(1, "K")]; V1 = base[(1, "V")]
    T0, T1 = 216, 220
    ops2, p2 = ep_scale(0, 2)
    spread(interleave_writes(ops2, p2, 0, 2), V0 + 91, K1 + 8)
    ops1, p1 = ep_scale(0, 1, dest=192)
    spread(ops1, K1 + 8, K1 + 18)
    ops0, p0 = ep_scale(0, 0, dest=176)
    spread(ops0, K1 + 18, K1 + 30)
    def rdst(h, b, i, T, ir, ist, off=0):
        at(ir, [ep_rd(h, b, i, T, off)])
        at(ist, ep_st(h, b, i, T))
    rdst(0, 2, 0, T0, K1 + 9,  K1 + 14)
    rdst(0, 2, 1, T1, K1 + 12, K1 + 19)
    rdst(0, 2, 2, T0, K1 + 17, K1 + 24)
    rdst(0, 2, 3, T1, K1 + 22, K1 + 29)
    spread_groups(ep_write(0, 1, p1), K1 + 31, K1 + 39)
    rdst(0, 1, 0, T0, K1 + 40, K1 + 45)
    rdst(0, 1, 1, T1, K1 + 47, K1 + 53)
    rdst(0, 1, 2, T0, K1 + 55, K1 + 61)
    rdst(0, 1, 3, T1, K1 + 63, K1 + 69)
    spread_groups(ep_write(0, 0, p0), K1 + 71, K1 + 79)
    rdst(0, 0, 0, T0, K1 + 80, K1 + 86)
    rdst(0, 0, 1, T1, K1 + 88, K1 + 94)
    H2 = rmB.half(2) + 4; H3 = rmB.half(3) + 4
    rdst(0, 0, 2, H2, V1 + 13, V1 + 20)
    rdst(0, 0, 3, H3, V1 + 28, V1 + 36)
    K0 = base[(0, "K")]
    for i in range(4): at(K0 + 1 + i, [("qdma", 0, 2, i, S_STG)])
    at(K0 + 5, [("qrd", 0, 1, S_ZB, 176)])
    items[K0 + 8]["pre"] += [("wl", ("q", 0, 1))]
    at(K0 + 13, [("qrd", 0, 2, S_STG, 176)])
    items[K0 + 16]["pre"] += [("wl", ("q", 0, 2))]
    for i in range(4): at(K0 + opt.qb0_at + opt.qb_sp*i, [("qdma", 1, 0, i, S_STG)])
    for i in range(4): at(K0 + opt.qb1_at + opt.qb_sp*i, [("qdma", 1, 1, i, S_ZB)])
    at(V0 + 24, [("qrd", 1, 0, S_STG, rmA.QA)])
    at(V0 + 29, [("wl", ("q", 1, 0))])
    for i in range(4): at(V0 + 29 + i, [("qdma", 1, 2, i, S_STG)])
    at(V0 + 36, [("qrd", 1, 1, S_ZB, rmA.QA)])
    at(V0 + opt.qc2_at, [("qrd", 1, 2, S_STG, rmA.QA)])
    items[K1 + 0]["pre"] += [("wl", ("q", 1, 0)), ("wl", ("q", 1, 1))]
    items[K1 + 8]["pre"] += [("wl", ("q", 1, 2))]
    if opt.stamp != 3:
        at(V0 + 95, [("stamp", "endA")])
    TB = [rmB.S[1] + 4*k for k in range(4)] + [rmB.S[2] + 4*k for k in range(4)] + [rmB.S[3] + 4*k for k in range(4)]
    tail = []
    if opt.dtmajor:
        c2 = V1 + 79; c1 = V1 + 87
    else:
        c2 = V1 + 87; c1 = V1 + 91
    o2, q2 = ep_scale(1, 2); o1, q1 = ep_scale(1, 1); o0, q0 = ep_scale(1, 0)
    A2 = interleave_writes(o2, q2, 1, 2)
    R2 = [ep_rd(1, 2, i, TB[i]) for i in range(4)]
    S2 = sum([ep_st(1, 2, i, TB[i]) for i in range(4)], [])
    W1 = sum(ep_write(1, 1, q1), [])
    R1 = [ep_rd(1, 1, i, TB[4+i]) for i in range(4)]
    S1 = sum([ep_st(1, 1, i, TB[4+i]) for i in range(4)], [])
    W0 = sum(ep_write(1, 0, q0), [])
    R0 = [ep_rd(1, 0, i, TB[8+i]) for i in range(4)]
    S0 = sum([ep_st(1, 0, i, TB[8+i]) for i in range(4)], [])
    if opt.dtmajor:
        spread(A2, c2 + 4, c2 + 13)
        at(c2 + 13, R2)
        spread(o1[:24], c1 + 4, V1 + 96)
        tail = o1[24:] + W1 + S2 + R1 + o0 + W0 + S1 + R0 + S0
    else:
        k = len(A2) // 2
        spread(A2[:k], c2 + 4, V1 + 96)
        tail = A2[k:] + R2 + o1 + W1 + S2 + R1 + o0 + W0 + S1 + R0 + S0
    def fmt(s, i):
        fr = FR + 4 * (i % NF)
        return s.format(fr=fr, fr1=fr + 1, fr2=fr + 2, fr3=fr + 3)
    def issue_reads(j):
        it = items[j]
        if j == 0 or items[j - 1]["tile"] != it["tile"]:
            sync(it["tile"])
            set_ab(it["tile"])
        for r in it["reads"]:
            if opt.memonly == 2:
                g.lg_issue(("f", j)); g.lg.pop(); g.lg.append(("f", j)); continue
            e(fmt(r, j)); g.lg_issue(("f", j))
    st["initems"] = True
    sync(0)
    for i in range(4): q_dma(0, 1, i, S_ZB)
    q_rd(0, 0, S_STG, 176)
    set_ab(0)
    first_done = True
    for j in range(NF - 1):
        for r in items[j]["reads"]:
            e(fmt(r, j)); g.lg_issue(("f", j))
    items[0]["pre"] = [("wl", ("q", 0, 0))] + items[0]["pre"]
    st["initems"] = True
    last_dma = opt.k1_at - opt.dmagap
    for i, it in enumerate(items):
        if opt.prio and i % 6 == 0:
            ph = (i + NF - 1) % 24
            if ph < 6:
                pass
        if opt.prio:
            ph = (i + NF - 1) % 24
            if ph % 6 == 0:
                e(f"s_setprio {3 - ph // 6}")
        st["cur_item"] = i
        for (qn, qi) in list(st["qdone"]):
            if i >= qi:
                st["done"].append(qn); st["qdone"].remove((qn, qi))
        if not opt.memonly:
            for op in it["pre"]: emit_op(op)
        e(f"s_waitcnt lgkmcnt({g.lg_wait(('f', i))})")
        if not opt.memonly:
            e(fmt(it["mfma"], i))
        if i + 1 == NI or items[i + 1]["tile"] != it["tile"]:
            st["done"].append(it["tile"])
        j = i + NF - 1
        if j < NI: issue_reads(j)
        if pend and i - last_dma >= opt.dmagap:
            emit_dma(); last_dma = i
        for op in it["post"]:
            if opt.memonly and (isinstance(op, str) or op[0] == "v"):
                if isinstance(op, str) and ("mbcnt" in op or "u32" in op or "v_and" in op or "v_lshr" in op):
                    emit_op(op)
                continue
            emit_op(op)
    assert not pend
    stamp("mfma_done")
    for op in tail:
        if opt.memonly and op[0] == "v": continue
        emit_op(op)
    if opt.stamp != 3: stamp("ep_done")
    if opt.padto:
        e("s_waitcnt vmcnt(0)")
        g.label("L_spin")
        e("s_sleep 2")
        e("s_memrealtime s[50:51]")
        e("s_waitcnt lgkmcnt(0)")
        e("s_sub_u32 s52, s50, s48")
        e(f"s_cmp_lt_u32 s52, {opt.padto}")
        e("s_cbranch_scc1 L_spin")
    if opt.stamp:
        e("s_waitcnt vmcnt(0)")
        stamp("end")
        e("s_memtime s[46:47]")
        e("s_waitcnt lgkmcnt(0)")
        e("s_mov_b32 s42, 0x10000000")
        e("s_mov_b32 s43, 0x00020000")
        e("s_lshl_b32 s33, s2, 3")
        e(f"s_add_u32 s33, s33, s{S_W}")
        e("s_lshl_b32 s33, s33, 8")
        e("v_mov_b32 v1, 0")
        for i in range(len(stamps)):
            e(f"v_mov_b32 v0, s{48+2*i}")
            e(f"buffer_store_dword v0, v1, s[40:43], s33 offen offset:{4*i}")
        e("s_sub_u32 s46, s46, s44")
        e("v_mov_b32 v0, s46")
        e(f"buffer_store_dword v0, v1, s[40:43], s33 offen offset:{4*len(stamps)}")
        print("nstamps", len(stamps), "stamps:", " ".join(stamps), file=sys.stderr)
        assert 48 + 2 * len(stamps) <= 102
    g.label("L_end")
    e("s_endpgm")

    out = HEADER
    out += f"; @launch grid=(256,1,1) block=(512,1,1) lds={LDS_BYTES}\n"
    out += '.amdgcn_target "amdgcn-amd-amdhsa--gfx950"\n.text\n'
    out += f".globl {NAME}\n.p2align 8\n.type {NAME},@function\n{NAME}:\n"
    out += "\n".join(g.L) + "\n"
    out += f""".section .rodata,"a"
.p2align 6
.amdhsa_kernel {NAME}
  .amdhsa_next_free_vgpr 256
  .amdhsa_next_free_sgpr {102 if (opt.stamp or opt.padto or opt.rot) else 48}
  .amdhsa_accum_offset 256
  .amdhsa_group_segment_fixed_size 0
  .amdhsa_kernarg_size 48
  .amdhsa_user_sgpr_count 2
  .amdhsa_user_sgpr_kernarg_segment_ptr 1
  .amdhsa_system_sgpr_workgroup_id_x 1
.end_amdhsa_kernel
"""
    return out

if __name__ == "__main__":
    ap = argparse.ArgumentParser()
    ap.add_argument("-o", default="standalone__mha_softmax__near_ridge.s")
    ap.add_argument("--nslot", type=int, default=4)
    ap.add_argument("--nf", type=int, default=4)
    ap.add_argument("--look", type=int, default=2)
    ap.add_argument("--pro", type=int, default=3)
    ap.add_argument("--fl_q", default="")
    ap.add_argument("--fl_k", default="")
    ap.add_argument("--fl_v", default="")
    ap.add_argument("--fl_o", default="")
    ap.add_argument("--headmap", type=int, default=0)
    ap.add_argument("--stamp", type=int, default=0)
    ap.add_argument("--dmagap", type=int, default=3)
    ap.add_argument("--prio", type=int, default=0)
    ap.add_argument("--memonly", type=int, default=0)
    ap.add_argument("--fl_oa", default=None)
    ap.add_argument("--fl_ob", default=None)
    ap.add_argument("--wbl2", type=int, default=0)
    ap.add_argument("--wbl2_at", type=int, default=3)
    ap.add_argument("--fakemem", type=int, default=0)
    ap.add_argument("--badstg", type=int, default=0)
    ap.add_argument("--nowait", type=int, default=0)
    ap.add_argument("--stampdma", type=int, default=0)
    ap.add_argument("--rot", type=int, default=0)
    ap.add_argument("--skip_o", type=lambda x: [int(c) for c in x], default=None)
    ap.add_argument("--nobar", type=int, default=0)
    ap.add_argument("--dtmajor", type=int, default=1)
    ap.add_argument("--korder", default="u")
    ap.add_argument("--qc2_at", type=int, default=84)
    ap.add_argument("--k1_at", type=int, default=6)
    ap.add_argument("--qb0_at", type=int, default=50)
    ap.add_argument("--qb1_at", type=int, default=74)
    ap.add_argument("--qb_sp", type=int, default=4)
    ap.add_argument("--looks", default="")
    ap.add_argument("--padto", type=int, default=0)
    opt = ap.parse_args()
    open(opt.o, "w").write(build(opt))
```

```python
import sys, math, struct, argparse

HEADER = """; Kernarg layout for this problem (48 bytes, ptrs only, base s[0:1]):
;   offset   0: d_in[0] q  shape=(16, 32, 256, 192) dtype=bfloat16 strides=(3145728, 98304, 384, 2) contiguous=True
;   offset   8: d_in[1] k  shape=(16, 32, 256, 192) dtype=bfloat16 strides=(3145728, 98304, 384, 2) contiguous=True
;   offset  16: d_in[2] v  shape=(16, 32, 256, 192) dtype=bfloat16 strides=(3145728, 98304, 384, 2) contiguous=True
"""
NAME = "standalone__mha_softmax__near_ridge_kernel"
HEAD_BYTES = 256 * 384
TILE_BYTES = 64 * 384
TOTAL_BYTES = 512 * HEAD_BYTES
STG_PITCH = 128
STG_WAVE = 32 * STG_PITCH
ZB_SLOT = 4 * TILE_BYTES
STG0 = 5 * TILE_BYTES
SPARE0 = STG0 + 8 * STG_WAVE
LDS_BYTES = SPARE0 + 2 * STG_WAVE
ZC0 = 2 * TILE_BYTES
S_ZB = 4
S_QW = 5
S_X0, S_X1 = 6, 7
S_ZC = 8
S_T2 = 9

def f32bits(x):
    return struct.unpack("<I", struct.pack("<f", x))[0]

FR = 224
SWR, SRR, SOR, INVR = 240, 241, 242, 243
VD = 244
AB = 245
KB0 = 249
NF_ = 250
VB0 = 251
VL = 252
VT0, VT1 = 254, 255
SRD_Q, SRD_K, SRD_V, SRD_O = 12, 16, 20, 24
S_W1024 = 28
S_HEAD = [29, 30]
S_TOFF = 31
S_NC = 32
S_WH = 34
S_U = 35
S_STG = 36
S_SO = 37
S_ST = 38
S_OB = [39, 33]
S_W = 3

class RM:
    def __init__(self, S, Q, O, MT):
        self.S = [16 * b for b in S]
        self.Q = [16 * b for b in Q]
        self.O = [16 * b for b in O]
        self.MT = 16 * MT
        s0 = self.S[0]
        self.F = {1: s0 + 4, 2: s0 + 5, 3: s0 + 6, 4: s0 + 7, 5: VT1}
        self.QA = s0
        self.SW, self.SR, self.SO, self.INV = SWR, SRR, SOR, INVR
    def q(self, s):
        return self.Q[s // 4] + 4 * (s % 4)
    def half(self, H):
        return self.S[H >> 1] + 8 * (H & 1)
RMS = [RM([0,1,2,3,4,5,6,7], [8,9,10], [8,9,10,11,12,13], 13),
       RM([4,5,6,7,0,8,9,10], [1,2,3], [1,2,3,11,12,13], 13)]

class Gen:
    def __init__(self):
        self.L = []; self.vm = []; self.lg = []
    def e(self, s): self.L.append("    " + s)
    def c(self, s): self.L.append("    ; " + s)
    def label(self, s): self.L.append(s + ":")
    def vm_issue(self, tag): self.vm.append(tag)
    def vm_wait(self, tags):
        last = -1
        for i, t in enumerate(self.vm):
            if t in tags: last = i
        assert last >= 0, tags
        return min(63, len(self.vm) - 1 - last)
    def lg_issue(self, tag): self.lg.append(tag)
    def lg_wait(self, tag):
        last = -1
        for i, t in enumerate(self.lg):
            if t == tag: last = i
        assert last >= 0, tag
        return min(15, len(self.lg) - 1 - last)

def build(opt):
    g = Gen(); e = g.e
    NS, NF, LOOK = opt.nslot, opt.nf, opt.look
    assert FR + 4 * NF <= SWR
    assert NS == 4 and LDS_BYTES == 163840
    fl = {"Q": opt.fl_q, "K": opt.fl_k, "V": opt.fl_v, "O": opt.fl_o}
    fl["O0"] = opt.fl_o if opt.fl_oa is None else opt.fl_oa
    fl["O1"] = opt.fl_o if opt.fl_ob is None else opt.fl_ob
    fl = {k: ((" " + v.replace("+", " ")) if v else "") for k, v in fl.items()}
    c = (192 ** -0.5) * math.log2(math.e)
    CLIT = f"0x{f32bits(c):08x}"
    stamps = []
    def stamp(name):
        if not opt.stamp: return
        if opt.stamp == 3:
            i = len(stamps); stamps.append(name + "_t"); stamps.append(name + "_c")
            e(f"s_memrealtime s[{48+2*i}:{49+2*i}]")
            e(f"s_memtime s[{50+2*i}:{51+2*i}]")
            return
        i = len(stamps); stamps.append(name)
        e(f"{'s_memtime' if opt.stamp == 2 else 's_memrealtime'} s[{48+2*i}:{49+2*i}]")

    tiles = [(0, "K", j) for j in range(4)] + [(0, "V", j) for j in range(4)] + \
            [(1, "K", j) for j in range(4)] + [(1, "V", j) for j in range(4)]
    tid = {t: i for i, t in enumerate(tiles)}
    NT = len(tiles)
    st = dict(issued=0, free=[0, 1, 2, 3], slot={}, done=[], released=set(), synced=-1, qdone=[], cur_item=0)

    e("s_cmp_ge_u32 s2, 256")
    e("s_cbranch_scc1 L_end")
    if opt.stamp:
        e("s_memtime s[44:45]")
        e("s_load_dwordx2 s[40:41], s[0:1], 40")
    stamp("start")
    if opt.padto:
        e("s_memrealtime s[48:49]")
    e("s_load_dwordx4 s[4:7], s[0:1], 0")
    e("s_load_dwordx4 s[8:11], s[0:1], 16")
    e("v_lshrrev_b32 v1, 6, v0")
    e("v_and_b32 v2, 63, v0")
    e(f"v_readfirstlane_b32 s{S_W}, v1")
    e("v_and_b32 v3, 31, v2")
    e("v_lshrrev_b32 v4, 5, v2")
    e("v_lshrrev_b32 v5, 3, v2")
    e("v_lshl_add_u32 v5, v1, 3, v5")
    e("v_bfe_u32 v6, v2, 4, 1")
    e("v_lshlrev_b32 v6, 2, v6")
    e("v_lshl_or_b32 v6, v4, 1, v6")
    e("v_and_b32 v7, 1, v1")
    e("v_or_b32 v6, v6, v7")
    e("v_and_b32 v7, 7, v2")
    e("v_xor_b32 v6, v6, v7")
    e("v_mul_u32_u24 v5, 384, v5")
    e(f"v_lshl_add_u32 v{VD}, v6, 4, v5")
    e(f"s_lshl_b32 s{S_W1024}, s{S_W}, 10")
    if opt.headmap == 0:
        e(f"s_mul_i32 s{S_HEAD[0]}, s2, {HEAD_BYTES}")
        e(f"s_add_u32 s{S_HEAD[1]}, s{S_HEAD[0]}, {256*HEAD_BYTES}")
    else:
        e(f"s_mul_i32 s{S_HEAD[0]}, s2, {2*HEAD_BYTES}")
        e(f"s_add_u32 s{S_HEAD[1]}, s{S_HEAD[0]}, {HEAD_BYTES}")
    if opt.fakemem:
        e(f"s_and_b32 s{S_HEAD[0]}, s2, 7")
        e(f"s_mul_i32 s{S_HEAD[0]}, s{S_HEAD[0]}, {HEAD_BYTES}")
        e(f"s_mov_b32 s{S_HEAD[1]}, s{S_HEAD[0]}")
    if opt.rot:
        if opt.rot == 1:
            e("s_and_b32 s90, s2, 3")
        elif opt.rot == 2:
            e("s_lshr_b32 s90, s2, 3")
            e("s_and_b32 s90, s90, 3")
        elif opt.rot == 3:
            e("s_lshr_b32 s90, s2, 3")
            e("s_add_u32 s90, s90, s2")
            e("s_and_b32 s90, s90, 3")
        for t in range(4):
            e(f"s_add_u32 s{96+t}, s90, {t}")
            e(f"s_and_b32 s{96+t}, s{96+t}, 3")
            e(f"s_mul_i32 s{92+t}, s{96+t}, {TILE_BYTES}")
    e("s_waitcnt lgkmcnt(0)")
    for srd, sp in ((SRD_Q, 4), (SRD_K, 6), (SRD_V, 8), (SRD_O, 10)):
        e(f"s_mov_b32 s{srd}, s{sp}")
        e(f"s_mov_b32 s{srd+1}, s{sp+1}")
        e(f"s_mov_b32 s{srd+2}, {TOTAL_BYTES}")
        e(f"s_mov_b32 s{srd+3}, 0x00020000")

    e(f"s_lshl_b32 s{S_T2}, s{S_W}, 12")
    e(f"s_add_u32 s{S_STG}, s{S_T2}, {STG0}")
    e(f"s_add_u32 s{S_ZB}, s{S_T2}, {ZB_SLOT}")
    e(f"s_add_u32 s{S_T2}, s{S_T2}, {SPARE0 - 6*STG_WAVE}")
    e(f"s_cmp_ge_u32 s{S_W}, 6")
    e(f"s_cselect_b32 s{S_ZB}, s{S_T2}, s{S_ZB}")
    e(f"s_mul_i32 s{S_QW}, s{S_W}, {24*384}")
    e(f"s_and_b32 s{S_X0}, s{S_W}, 1")
    e(f"s_lshl_b32 s{S_X0}, s{S_X0}, 4")
    e(f"s_xor_b32 s{S_X1}, s{S_X0}, 16")
    def q_dma(h, c, i, zone):
        e(f"v_xor_b32 v{VT0}, s{S_X0 if i % 2 == 0 else S_X1}, v{VD}")
        e(f"s_add_u32 m0, s{zone}, {i*1024}")
        e(f"s_add_u32 s{S_TOFF}, s{S_HEAD[h]}, s{S_QW}")
        e(f"s_add_u32 s{S_TOFF}, s{S_TOFF}, {i*3072 + c*128}")
        e(f"buffer_load_dwordx4 v{VT0}, s[{SRD_Q}:{SRD_Q+3}], s{S_TOFF} offen{fl['Q']} lds")
        g.vm_issue(("Qd", h, c))
    def q_rd(h, c, zone, r0):
        rm = RMS[h]
        e(f"s_waitcnt vmcnt({g.vm_wait([('Qd', h, c)])})")
        e(f"v_add_u32 v{r0}, s{zone}, v{KB0}")
        for j in range(1, 4):
            e(f"v_xor_b32 v{r0+j}, {32*j}, v{r0}")
        for j in range(4):
            sidx = 4 * c + j
            e(f"ds_read_b128 v[{rm.q(sidx)}:{rm.q(sidx)+3}], v{r0+j}")
            g.lg_issue(("q", h, c))
    pend = []
    def emit_dma():
        n, b = pend.pop(0)
        h, kind, t = tiles[n]
        slot = st["slot"][n]
        srd = {"Q": SRD_Q, "K": SRD_K, "V": SRD_V}[kind]
        e(f"s_add_u32 m0, s{S_W1024}, {slot*TILE_BYTES + b*8064}")
        if opt.rot:
            e(f"s_add_u32 s{S_TOFF}, s{S_HEAD[h]}, s{92+t}")
        else:
            e(f"s_add_u32 s{S_TOFF}, s{S_HEAD[h]}, {t*TILE_BYTES}")
        e(f"buffer_load_dwordx4 v{VD}, s[{srd}:{srd+3}], s{S_TOFF} offen offset:{128*b}{fl[kind]} lds")
        g.vm_issue(("T", n))
    def issue_next(now=True):
        n = st["issued"]
        slot = st["free"].pop(0)
        st["slot"][n] = slot
        st["issued"] += 1
        for b in range(3):
            pend.append((n, b))
        if now:
            while pend: emit_dma()
    def sync(n):
        assert n == st["synced"] + 1, (n, st["synced"])
        assert n < st["issued"], f"tile {n} not issued before its sync"
        st["synced"] = n
        h, kind, t = tiles[n]
        while any(p[0] <= n for p in pend):
            emit_dma()
        g.c(f"---- sync tile {n} ({kind}{t} head {h})")
        if not opt.nowait:
            e(f"s_waitcnt vmcnt({g.vm_wait([('T', n)])})")
        if not (opt.nobar and st.get("initems")):
            e("s_barrier")
        if opt.stamp and (h, kind, t) in STAMP_AT:
            stamp(f"{kind}{t}{'AB'[h]}")
        if opt.wbl2 and (h, kind, t) == (1, "V", opt.wbl2_at):
            assert opt.wbl2_at == 3
            e(f"s_cmp_lt_u32 s2, {8*opt.wbl2}")
            e("s_cbranch_scc0 L_nowb")
            e(f"s_cmp_eq_u32 s{S_W}, 0")
            e("s_cbranch_scc0 L_nowb")
            e("buffer_wbl2 sc1")
            g.label("L_nowb")
        for d in st["done"]:
            if d not in st["released"]:
                st["released"].add(d)
                if d == "ZC": st["free"] += [2, 3]
                else: st["free"].append(st["slot"][d])
        while st["issued"] < NT and st["free"] and st["issued"] - (n + 1) < LOOK:
            issue_next(now=(opt.dmagap == 0 or not st.get("initems")))
        if opt.stamp and opt.stampdma and (h, kind, t) in STAMP_AT:
            stamp(f"d{kind}{t}{'AB'[h]}")
    if opt.stamp == 3:
        STAMP_AT = {(0,"K",0),(0,"V",0),(0,"V",2),(1,"K",0),(1,"K",2),(1,"V",0)}
    elif opt.stampdma:
        STAMP_AT = {(0,"K",1),(0,"K",2),(0,"V",1),(0,"V",3),(1,"Q",3),(1,"K",0),(1,"K",1),(1,"K",2),(1,"K",3),(1,"V",0)}
    else:
      STAMP_AT = {(0,"Q",0),(0,"K",0),(0,"K",1),(0,"K",3),(0,"V",0),(0,"V",1),(0,"V",2),(0,"V",3),(1,"K",0),(1,"K",1),(1,"K",3),(1,"V",0),(1,"V",1),(1,"V",3)}

    issue_next()
    for i in range(4): q_dma(0, 0, i, S_STG)

    e("v_bfe_u32 v5, v3, 1, 1")
    e("v_lshlrev_b32 v5, 2, v5")
    e("v_bfe_u32 v6, v3, 2, 1")
    e("v_lshl_or_b32 v5, v6, 1, v5")
    e("v_bfe_u32 v6, v3, 3, 1")
    e("v_or_b32 v5, v5, v6")
    e("v_xor_b32 v5, v5, v4")
    e("v_lshlrev_b32 v5, 4, v5")
    e(f"v_lshl_add_u32 v{KB0}, v3, 7, v5")
    e("v_bfe_u32 v5, v2, 2, 2")
    e("v_lshl_add_u32 v6, v4, 2, v5")
    e("v_lshlrev_b32 v6, 7, v6")
    e("v_bfe_u32 v7, v2, 4, 1")
    e("v_lshlrev_b32 v7, 1, v7")
    e("v_bfe_u32 v8, v2, 1, 1")
    e("v_or_b32 v7, v7, v8")
    e("v_bfe_u32 v8, v2, 3, 1")
    e("v_lshlrev_b32 v8, 2, v8")
    e("v_lshl_or_b32 v8, v4, 1, v8")
    e("v_xor_b32 v7, v7, v8")
    e("v_lshl_add_u32 v6, v7, 4, v6")
    e("v_and_b32 v7, 1, v2")
    e(f"v_lshl_add_u32 v{VB0}, v7, 3, v6")
    e(f"s_mov_b32 s{S_NC}, 0x{f32bits(-c):08x}")
    e(f"s_mul_i32 s{S_SO}, s{S_W}, {32*384}")
    e(f"s_add_u32 s{S_OB[0]}, s{S_HEAD[0]}, s{S_SO}")
    e(f"s_add_u32 s{S_OB[1]}, s{S_HEAD[1]}, s{S_SO}")
    e("v_and_b32 v5, 7, v3")
    e(f"v_lshlrev_b32 v{SWR}, 7, v3")
    e(f"v_lshl_add_u32 v{SWR}, v5, 4, v{SWR}")
    e(f"v_lshl_add_u32 v{SWR}, v4, 3, v{SWR}")
    e(f"v_add_u32 v{SWR}, s{S_STG}, v{SWR}")
    e(f"v_lshlrev_b32 v{SRR}, 4, v2")
    e(f"v_add_u32 v{SRR}, s{S_STG}, v{SRR}")
    e("v_lshrrev_b32 v5, 3, v2")
    e("v_and_b32 v6, 7, v2")
    e("v_xor_b32 v6, v6, v5")
    e(f"v_mul_u32_u24 v{SOR}, 384, v5")
    e(f"v_lshl_add_u32 v{SOR}, v6, 4, v{SOR}")
    if opt.stamp != 3: stamp("issued")

    def set_ab(n, r0=AB):
        h, kind, t = tiles[n]
        base = st["slot"][n] * TILE_BYTES
        if kind == "V":
            e(f"v_add_u32 v{r0}, {base}, v{VB0}")
            e(f"v_xor_b32 v{r0+1}, 16, v{r0}")
            e(f"v_xor_b32 v{r0+2}, 64, v{r0}")
            e(f"v_xor_b32 v{r0+3}, 0x50, v{r0}")
        else:
            e(f"v_add_u32 v{r0}, {base}, v{KB0}")
            if kind == "Q":
                e(f"v_add_u32 v{r0}, s{S_U}, v{r0}")
            for j in range(1, 4):
                e(f"v_xor_b32 v{r0+j}, {32*j}, v{r0}")

    lblc = [0]
    def q_read(n, r0):
        h, kind, j = tiles[n]
        rm = RMS[h]
        lblc[0] += 1
        lab = f"L_q{lblc[0]}"
        if opt.rot:
            e(f"s_cmp_eq_u32 s{S_WH}, s{96+j}")
        else:
            e(f"s_cmp_eq_u32 s{S_WH}, {j}")
        e(f"s_cbranch_scc0 {lab}")
        set_ab(n, r0)
        for s in range(12):
            e(f"ds_read_b128 v[{rm.q(s)}:{rm.q(s)+3}], v{r0 + (s & 3)} offset:{(s >> 2)*8192}")
        if not st.get("initems"):
            e("s_waitcnt lgkmcnt(0)")
            g.label(lab)
            st["done"].append(n)
        else:
            g.label(lab)
            st["qdone"].append((n, st["cur_item"] + NF + 1))

    def max_tile(rm, T):
        b = rm.S[T]; m = rm.MT + T
        out = [f"v_max3_f32 v{m}, v{b}, v{b+1}, v{b+2}"]
        for k in range(6):
            out.append(f"v_max3_f32 v{m}, v{m}, v{b+3+2*k}, v{b+4+2*k}")
        out.append(f"v_max_f32 v{m}, v{m}, v{b+15}")
        out.append(f"v_mul_f32 v{m}, s{S_NC}, v{m}")
        return out
    def exp_ops(rm, T, nreg):
        b = rm.S[T]
        Fm = lambda i: f"v_fmamk_f32 v{b+i}, v{b+i}, {CLIT}, v{nreg}"
        Ex = lambda i: f"v_exp_f32 v{b+i}, v{b+i}"
        out = [Fm(0), Fm(1)]
        for i in range(16):
            out.append(Ex(i))
            if i + 2 < 16: out.append(Fm(i + 2))
        return out
    def prod_half(rm, H, first=False):
        b = rm.half(H); T = H >> 1
        out = []
        if T <= 5:
            fr = rm.F[T] if T >= 1 else VT0
            for i in range(8):
                out.append(f"v_mul_f32 v{b+i}, v{fr}, v{b+i}")
        adds = []
        for i in range(8):
            if first and i < 2:
                adds.append(f"v_mov_b32 v{VL+i}, v{b+i}")
            else:
                adds.append(f"v_add_f32 v{VL+(i&1)}, v{VL+(i&1)}, v{b+i}")
        cv = [f"v_cvt_pk_bf16_f32 v{b+j}, v{b+2*j}, v{b+2*j+1}" for j in range(4)]
        for j in range(4):
            out += [adds[2*j], adds[2*j+1], cv[j]]
        return out
    def sm_head(rm):
        m = rm.MT
        out = ["s_nop 7", "s_nop 3"]
        out += max_tile(rm, 7)
        out += [f"v_min3_f32 v{NF_}, v{m}, v{m+1}, v{m+2}",
                f"v_min3_f32 v{NF_}, v{NF_}, v{m+3}, v{m+4}",
                f"v_min3_f32 v{NF_}, v{NF_}, v{m+5}, v{m+6}",
                f"v_min_f32 v{NF_}, v{NF_}, v{m+7}",
                f"v_mov_b32 v{VT0}, v{NF_}", "s_nop 1",
                f"v_permlane32_swap_b32 v{NF_}, v{VT0}", "s_nop 1",
                f"v_min_f32 v{NF_}, v{NF_}, v{VT0}",
                f"v_sub_f32 v{VT0}, v{NF_}, v{m}",
                f"v_exp_f32 v{VT0}, v{VT0}",
                f"v_sub_f32 v{m+5}, v{NF_}, v{m+5}"]
        out += prod_half(rm, 0, first=True)
        out += [f"v_exp_f32 v{rm.F[5]}, v{m+5}"]
        for T in range(1, 5):
            out.append(f"v_sub_f32 v{rm.F[T]}, v{NF_}, v{m+T}")
        for T in range(1, 5):
            out.append(f"v_exp_f32 v{rm.F[T]}, v{rm.F[T]}")
        out.append("s_nop 0")
        return out
    def inv_l(rm):
        return [f"v_add_f32 v{VL}, v{VL}, v{VL+1}",
                f"v_mov_b32 v{VT0}, v{VL}", "s_nop 1",
                f"v_permlane32_swap_b32 v{VL}, v{VT0}", "s_nop 1",
                f"v_add_f32 v{VL}, v{VL}, v{VT0}",
                f"v_rcp_f32 v{rm.INV}, v{VL}"]
    def ep_addr(rm):
        SW, SR, SO = rm.SW, rm.SR, rm.SO
        return [f"v_mbcnt_lo_u32_b32 v{VT0}, -1, 0",
                f"v_mbcnt_hi_u32_b32 v{VT0}, -1, v{VT0}",
                f"v_and_b32 v{SR}, 31, v{VT0}",
                f"v_mul_u32_u24 v{SW}, {STG_PITCH}, v{SR}",
                f"v_lshrrev_b32 v{SR}, 5, v{VT0}",
                f"v_lshl_add_u32 v{SW}, v{SR}, 3, v{SW}",
                f"v_add_u32 v{SW}, s{S_STG}, v{SW}",
                f"v_lshrrev_b32 v{SO}, 3, v{VT0}",
                f"v_mul_u32_u24 v{SR}, {STG_PITCH}, v{SO}",
                f"v_and_b32 v{VT0}, 7, v{VT0}",
                f"v_lshl_add_u32 v{SR}, v{VT0}, 4, v{SR}",
                f"v_add_u32 v{SR}, s{S_STG}, v{SR}",
                f"v_mul_u32_u24 v{SO}, 384, v{SO}",
                f"v_lshl_add_u32 v{SO}, v{VT0}, 4, v{SO}"]
    def ep_scale(h, b, dest=None):
        rm = RMS[h]
        ops = []; pairs = []
        for dd in range(2):
            R = rm.O[2*b + dd]
            for gq in range(4):
                B = R + 4 * gq
                D = B if dest is None else dest + 2 * (4*dd + gq)
                for i in range(4):
                    ops.append(("v", f"v_mul_f32 v{B+i}, v{rm.INV}, v{B+i}"))
                ops.append(("v", f"v_cvt_pk_bf16_f32 v{D}, v{B}, v{B+1}"))
                ops.append(("v", f"v_cvt_pk_bf16_f32 v{D+1}, v{B+2}, v{B+3}"))
                pairs.append(D)
        return ops, pairs
    def ep_write(h, b, pairs, off=0):
        out = []
        for k, D in enumerate(pairs):
            if k == 0:
                out.append([("dsw", f"ds_write_b64 v{SWR}, v[{D}:{D+1}]", ("ow", h, b))])
            else:
                out.append([("v", f"v_xor_b32 v{VT0}, {16*k}, v{SWR}"),
                            ("dsw", f"ds_write_b64 v{VT0}, v[{D}:{D+1}]", ("ow", h, b))])
        return out
    def ep_rd(h, b, i, T, off=0):
        return ("dsr", f"ds_read_b128 v[{T}:{T+3}], v{SRR} offset:{off + i*1024}", ("or", h, b, i))
    def ep_st(h, b, i, T):
        return [("wl", ("or", h, b, i)),
                ("s", f"s_add_u32 s{S_ST}, s{S_OB[h]}, {3072*i}"),
                ("st", f"buffer_store_dwordx4 v[{T}:{T+3}], v{SOR}, s[{SRD_O}:{SRD_O+3}], s{S_ST} offen offset:{128*b}{fl['O%d' % h]}", ("O", h))]
    def interleave_writes(ops, pairs, h, b, off=0):
        out = []
        w = ep_write(h, b, pairs, off)
        for k in range(8):
            out += ops[6*k:6*k+6] + w[k]
        return out
    def emit_op(op):
        if isinstance(op, str):
            e(op); return
        k = op[0]
        if k in ("v", "s"): e(op[1])
        elif k in ("dsw", "dsr"): e(op[1]); g.lg_issue(op[2])
        elif k == "wl": e(f"s_waitcnt lgkmcnt({g.lg_wait(op[1])})")
        elif k == "st":
            if opt.skip_o is not None and op[2][1] in opt.skip_o: return
            e(op[1]); g.vm_issue(op[2])
        elif k == "sync": sync(op[1])
        elif k == "qdma": q_dma(op[1], op[2], op[3], op[4])
        elif k == "qrd": q_rd(op[1], op[2], op[3], op[4])
        elif k == "rel": st["done"].append(op[1])
        elif k == "stamp": stamp(op[1])
        else: raise ValueError(op)

    items = []
    def spread(ops, lo, hi):
        n = hi - lo
        assert n > 0
        for k, op in enumerate(ops):
            idx = lo + (k * n) // len(ops)
            if k > 0 and isinstance(op, tuple) and op[0] == "dsw" and f"v{VT0}," in op[1]:
                idx = last_idx
            items[idx]["post"].append(op)
            last_idx = idx

    base = {}
    for h in range(2):
        rm = RMS[h]
        base[(h, "K")] = len(items)
        for t in range(4):
            n = tid[(h, "K", t)]
            korder = [(u, s) for u in range(2) for s in range(12)]
            if h == 0 and t == 0:
                korder = [(u, s) for cb in range(3) for u in range(2) for s in range(4*cb, 4*cb+4)]
            for u, s in korder:
                if True:
                    d = rm.S[2 * t + u]
                    items.append(dict(tile=n,
                        reads=[f"ds_read_b128 v[{{fr}}:{{fr3}}], v{AB + (s & 3)} offset:{(s >> 2)*8192 + u*4096}"],
                        mfma=f"v_mfma_f32_32x32x16_bf16 v[{d}:{d+15}], v[{{fr}}:{{fr3}}], v[{rm.q(s)}:{rm.q(s)+3}], " + ("0" if s == 0 else f"v[{d}:{d+15}]"),
                        pre=[], post=[]))
        base[(h, "V")] = len(items)
        for t in range(4):
            n = tid[(h, "V", t)]
            if t < 3:
                order = [(ks, dt) for ks in range(4) for dt in range(6)]
            elif h == 1 and opt.dtmajor:
                order = [(ks, dt) for b in (2, 1, 0) for dt in (2*b, 2*b+1) for ks in range(4)]
            else:
                order = [(ks, dt) for ks in range(2) for dt in range(6)] + \
                        [(ks, dt) for b in (2, 1, 0) for dt in (2*b, 2*b+1) for ks in (2, 3)]
            for ks, dt in order:
                d = rm.O[dt]
                H = 4 * t + ks
                pk = rm.half(H)
                first = (t == 0 and ks == 0)
                items.append(dict(tile=n,
                    reads=[f"ds_read_b64_tr_b16 v[{{fr}}:{{fr1}}], v{AB + 2*(dt & 1)} offset:{(dt >> 1)*8192 + ks*2048}",
                           f"ds_read_b64_tr_b16 v[{{fr2}}:{{fr3}}], v{AB + 2*(dt & 1) + 1} offset:{(dt >> 1)*8192 + ks*2048 + 1024}"],
                    mfma=f"v_mfma_f32_32x32x16_bf16 v[{d}:{d+15}], v[{{fr}}:{{fr3}}], v[{pk}:{pk+3}], " + ("0" if first else f"v[{d}:{d+15}]"),
                    pre=[], post=[]))
    NI = len(items)
    for h in range(2):
        rm = RMS[h]
        K0 = base[(h, "K")]; V0 = base[(h, "V")]
        comp = [12 * T + 11 for T in range(8)]
        if h == 0:
            comp[0] = 19; comp[1] = 23
        for T in range(7):
            lo = K0 + comp[T] + 5
            spread(max_tile(rm, T), lo, lo + 4)
        for T in range(6):
            lo = K0 + comp[T] + 9
            spread(exp_ops(rm, T, rm.MT + T), lo, lo + 12)
        items[V0]["pre"] += sm_head(rm)
        for H in range(1, 12):
            spread(prod_half(rm, H), V0 + 6*(H-1), V0 + 6*H - 1)
        e6 = exp_ops(rm, 6, NF_); e7 = exp_ops(rm, 7, NF_)
        if h == 1 and opt.dtmajor:
            spread(e6, V0 + 0, V0 + 48)
            spread(e7, V0 + 6, V0 + 56)
        else:
            spread(e6, V0 + 0, V0 + 58)
            spread(e7, V0 + 6, V0 + 64)
    def at(idx, ops):
        items[idx]["post"] += ops
    def spread_groups(groups, lo, hi):
        n = hi - lo
        for k, grp in enumerate(groups):
            items[lo + (k * n) // len(groups)]["post"] += grp
    for h in range(2):
        rm = RMS[h]
        V0 = base[(h, "V")]
        if h == 0 or not opt.dtmajor:
            spread(prod_half(rm, 12), V0 + 66, V0 + 71)
            spread(prod_half(rm, 13), V0 + 72, V0 + 77)
            spread(prod_half(rm, 14), V0 + 72, V0 + 83)
            spread(prod_half(rm, 15), V0 + 73, V0 + 83)
            at(V0 + 84, inv_l(rm))
        else:
            spread(prod_half(rm, 12), V0 + 52, V0 + 62)
            spread(prod_half(rm, 13), V0 + 56, V0 + 66)
            spread(prod_half(rm, 14), V0 + 60, V0 + 70)
            spread(prod_half(rm, 15), V0 + 62, V0 + 71)
            at(V0 + 72, inv_l(rm))
    rmA, rmB = RMS
    V0 = base[(0, "V")]; K1 = base[(1, "K")]; V1 = base[(1, "V")]
    T0, T1 = 216, 220
    ops2, p2 = ep_scale(0, 2)
    spread(interleave_writes(ops2, p2, 0, 2), V0 + 91, K1 + 8)
    ops1, p1 = ep_scale(0, 1, dest=192)
    spread(ops1, K1 + 8, K1 + 18)
    ops0, p0 = ep_scale(0, 0, dest=176)
    spread(ops0, K1 + 18, K1 + 30)
    def rdst(h, b, i, T, ir, ist, off=0):
        at(ir, [ep_rd(h, b, i, T, off)])
        at(ist, ep_st(h, b, i, T))
    rdst(0, 2, 0, T0, K1 + 9,  K1 + 14)
    rdst(0, 2, 1, T1, K1 + 12, K1 + 19)
    rdst(0, 2, 2, T0, K1 + 17, K1 + 24)
    rdst(0, 2, 3, T1, K1 + 22, K1 + 29)
    spread_groups(ep_write(0, 1, p1), K1 + 31, K1 + 39)
    rdst(0, 1, 0, T0, K1 + 40, K1 + 45)
    rdst(0, 1, 1, T1, K1 + 47, K1 + 53)
    rdst(0, 1, 2, T0, K1 + 55, K1 + 61)
    rdst(0, 1, 3, T1, K1 + 63, K1 + 69)
    spread_groups(ep_write(0, 0, p0), K1 + 71, K1 + 79)
    rdst(0, 0, 0, T0, K1 + 80, K1 + 86)
    rdst(0, 0, 1, T1, K1 + 88, K1 + 94)
    H2 = rmB.half(2) + 4; H3 = rmB.half(3) + 4
    rdst(0, 0, 2, H2, V1 + 13, V1 + 20)
    rdst(0, 0, 3, H3, V1 + 28, V1 + 36)
    K0 = base[(0, "K")]
    for i in range(4): at(K0 + 1 + i, [("qdma", 0, 2, i, S_STG)])
    at(K0 + 5, [("qrd", 0, 1, S_ZB, 176)])
    items[K0 + 8]["pre"] += [("wl", ("q", 0, 1))]
    at(K0 + 13, [("qrd", 0, 2, S_STG, 176)])
    items[K0 + 16]["pre"] += [("wl", ("q", 0, 2))]
    for i in range(4): at(K0 + opt.qb0_at + opt.qb_sp*i, [("qdma", 1, 0, i, S_STG)])
    for i in range(4): at(K0 + opt.qb1_at + opt.qb_sp*i, [("qdma", 1, 1, i, S_ZB)])
    at(V0 + 24, [("qrd", 1, 0, S_STG, rmA.QA)])
    at(V0 + 29, [("wl", ("q", 1, 0))])
    for i in range(4): at(V0 + 29 + i, [("qdma", 1, 2, i, S_STG)])
    at(V0 + 36, [("qrd", 1, 1, S_ZB, rmA.QA)])
    at(V0 + opt.qc2_at, [("qrd", 1, 2, S_STG, rmA.QA)])
    items[K1 + 0]["pre"] += [("wl", ("q", 1, 0)), ("wl", ("q", 1, 1))]
    items[K1 + 8]["pre"] += [("wl", ("q", 1, 2))]
    if opt.stamp != 3:
        at(V0 + 95, [("stamp", "endA")])
    TB = [rmB.S[1] + 4*k for k in range(4)] + [rmB.S[2] + 4*k for k in range(4)] + [rmB.S[3] + 4*k for k in range(4)]
    tail = []
    if opt.dtmajor:
        c2 = V1 + 79; c1 = V1 + 87
    else:
        c2 = V1 + 87; c1 = V1 + 91
    o2, q2 = ep_scale(1, 2); o1, q1 = ep_scale(1, 1); o0, q0 = ep_scale(1, 0)
    A2 = interleave_writes(o2, q2, 1, 2)
    R2 = [ep_rd(1, 2, i, TB[i]) for i in range(4)]
    S2 = sum([ep_st(1, 2, i, TB[i]) for i in range(4)], [])
    W1 = sum(ep_write(1, 1, q1), [])
    R1 = [ep_rd(1, 1, i, TB[4+i]) for i in range(4)]
    S1 = sum([ep_st(1, 1, i, TB[4+i]) for i in range(4)], [])
    W0 = sum(ep_write(1, 0, q0), [])
    R0 = [ep_rd(1, 0, i, TB[8+i]) for i in range(4)]
    S0 = sum([ep_st(1, 0, i, TB[8+i]) for i in range(4)], [])
    if opt.dtmajor:
        spread(A2, c2 + 4, c2 + 13)
        at(c2 + 13, R2)
        spread(o1[:24], c1 + 4, V1 + 96)
        tail = o1[24:] + W1 + S2 + R1 + o0 + W0 + S1 + R0 + S0
    else:
        k = len(A2) // 2
        spread(A2[:k], c2 + 4, V1 + 96)
        tail = A2[k:] + R2 + o1 + W1 + S2 + R1 + o0 + W0 + S1 + R0 + S0
    def fmt(s, i):
        fr = FR + 4 * (i % NF)
        return s.format(fr=fr, fr1=fr + 1, fr2=fr + 2, fr3=fr + 3)
    def issue_reads(j):
        it = items[j]
        if j == 0 or items[j - 1]["tile"] != it["tile"]:
            sync(it["tile"])
            set_ab(it["tile"])
        for r in it["reads"]:
            if opt.memonly == 2:
                g.lg_issue(("f", j)); g.lg.pop(); g.lg.append(("f", j)); continue
            e(fmt(r, j)); g.lg_issue(("f", j))
    st["initems"] = True
    sync(0)
    for i in range(4): q_dma(0, 1, i, S_ZB)
    q_rd(0, 0, S_STG, 176)
    set_ab(0)
    first_done = True
    for j in range(NF - 1):
        for r in items[j]["reads"]:
            e(fmt(r, j)); g.lg_issue(("f", j))
    items[0]["pre"] = [("wl", ("q", 0, 0))] + items[0]["pre"]
    st["initems"] = True
    last_dma = opt.k1_at - opt.dmagap
    for i, it in enumerate(items):
        if opt.prio and i % 6 == 0:
            ph = (i + NF - 1) % 24
            if ph < 6:
                pass
        if opt.prio:
            ph = (i + NF - 1) % 24
            if ph % 6 == 0:
                e(f"s_setprio {3 - ph // 6}")
        st["cur_item"] = i
        for (qn, qi) in list(st["qdone"]):
            if i >= qi:
                st["done"].append(qn); st["qdone"].remove((qn, qi))
        if not opt.memonly:
            for op in it["pre"]: emit_op(op)
        e(f"s_waitcnt lgkmcnt({g.lg_wait(('f', i))})")
        if not opt.memonly:
            e(fmt(it["mfma"], i))
        if i + 1 == NI or items[i + 1]["tile"] != it["tile"]:
            st["done"].append(it["tile"])
        j = i + NF - 1
        if j < NI: issue_reads(j)
        if pend and i - last_dma >= opt.dmagap:
            emit_dma(); last_dma = i
        for op in it["post"]:
            if opt.memonly and (isinstance(op, str) or op[0] == "v"):
                if isinstance(op, str) and ("mbcnt" in op or "u32" in op or "v_and" in op or "v_lshr" in op):
                    emit_op(op)
                continue
            emit_op(op)
    assert not pend
    stamp("mfma_done")
    for op in tail:
        if opt.memonly and op[0] == "v": continue
        emit_op(op)
    if opt.stamp != 3: stamp("ep_done")
    if opt.padto:
        e("s_waitcnt vmcnt(0)")
        g.label("L_spin")
        e("s_sleep 2")
        e("s_memrealtime s[50:51]")
        e("s_waitcnt lgkmcnt(0)")
        e("s_sub_u32 s52, s50, s48")
        e(f"s_cmp_lt_u32 s52, {opt.padto}")
        e("s_cbranch_scc1 L_spin")
    if opt.stamp:
        e("s_waitcnt vmcnt(0)")
        stamp("end")
        e("s_memtime s[46:47]")
        e("s_waitcnt lgkmcnt(0)")
        e("s_mov_b32 s42, 0x10000000")
        e("s_mov_b32 s43, 0x00020000")
        e("s_lshl_b32 s33, s2, 3")
        e(f"s_add_u32 s33, s33, s{S_W}")
        e("s_lshl_b32 s33, s33, 8")
        e("v_mov_b32 v1, 0")
        for i in range(len(stamps)):
            e(f"v_mov_b32 v0, s{48+2*i}")
            e(f"buffer_store_dword v0, v1, s[40:43], s33 offen offset:{4*i}")
        e("s_sub_u32 s46, s46, s44")
        e("v_mov_b32 v0, s46")
        e(f"buffer_store_dword v0, v1, s[40:43], s33 offen offset:{4*len(stamps)}")
        print("nstamps", len(stamps), "stamps:", " ".join(stamps), file=sys.stderr)
        assert 48 + 2 * len(stamps) <= 102
    g.label("L_end")
    e("s_endpgm")

    out = HEADER
    out += f"; @launch grid=(256,1,1) block=(512,1,1) lds={LDS_BYTES}\n"
    out += '.amdgcn_target "amdgcn-amd-amdhsa--gfx950"\n.text\n'
    out += f".globl {NAME}\n.p2align 8\n.type {NAME},@function\n{NAME}:\n"
    out += "\n".join(g.L) + "\n"
    out += f""".section .rodata,"a"
.p2align 6
.amdhsa_kernel {NAME}
  .amdhsa_next_free_vgpr 256
  .amdhsa_next_free_sgpr {102 if (opt.stamp or opt.padto or opt.rot) else 48}
  .amdhsa_accum_offset 256
  .amdhsa_group_segment_fixed_size 0
  .amdhsa_kernarg_size 48
  .amdhsa_user_sgpr_count 2
  .amdhsa_user_sgpr_kernarg_segment_ptr 1
  .amdhsa_system_sgpr_workgroup_id_x 1
.end_amdhsa_kernel
"""
    return out

if __name__ == "__main__":
    ap = argparse.ArgumentParser()
    ap.add_argument("-o", default="standalone__mha_softmax__near_ridge.s")
    ap.add_argument("--nslot", type=int, default=4)
    ap.add_argument("--nf", type=int, default=4)
    ap.add_argument("--look", type=int, default=2)
    ap.add_argument("--pro", type=int, default=3)
    ap.add_argument("--fl_q", default="")
    ap.add_argument("--fl_k", default="")
    ap.add_argument("--fl_v", default="")
    ap.add_argument("--fl_o", default="")
    ap.add_argument("--headmap", type=int, default=0)
    ap.add_argument("--stamp", type=int, default=0)
    ap.add_argument("--dmagap", type=int, default=3)
    ap.add_argument("--prio", type=int, default=0)
    ap.add_argument("--memonly", type=int, default=0)
    ap.add_argument("--fl_oa", default=None)
    ap.add_argument("--fl_ob", default=None)
    ap.add_argument("--wbl2", type=int, default=0)
    ap.add_argument("--wbl2_at", type=int, default=3)
    ap.add_argument("--fakemem", type=int, default=0)
    ap.add_argument("--badstg", type=int, default=0)
    ap.add_argument("--nowait", type=int, default=0)
    ap.add_argument("--stampdma", type=int, default=0)
    ap.add_argument("--rot", type=int, default=0)
    ap.add_argument("--skip_o", type=lambda x: [int(c) for c in x], default=None)
    ap.add_argument("--nobar", type=int, default=0)
    ap.add_argument("--dtmajor", type=int, default=1)
    ap.add_argument("--korder", default="u")
    ap.add_argument("--qc2_at", type=int, default=84)
    ap.add_argument("--k1_at", type=int, default=6)
    ap.add_argument("--qb0_at", type=int, default=50)
    ap.add_argument("--qb1_at", type=int, default=74)
    ap.add_argument("--qb_sp", type=int, default=4)
    ap.add_argument("--padto", type=int, default=0)
    opt = ap.parse_args()
    open(opt.o, "w").write(build(opt))
```

```python
import sys, math, struct, argparse

HEADER = """; Kernarg layout for this problem (48 bytes, ptrs only, base s[0:1]):
;   offset   0: d_in[0] q  shape=(16, 32, 256, 192) dtype=bfloat16 strides=(3145728, 98304, 384, 2) contiguous=True
;   offset   8: d_in[1] k  shape=(16, 32, 256, 192) dtype=bfloat16 strides=(3145728, 98304, 384, 2) contiguous=True
;   offset  16: d_in[2] v  shape=(16, 32, 256, 192) dtype=bfloat16 strides=(3145728, 98304, 384, 2) contiguous=True
"""
NAME = "standalone__mha_softmax__near_ridge_kernel"
HEAD_BYTES = 256 * 384
TILE_BYTES = 64 * 384
TOTAL_BYTES = 512 * HEAD_BYTES
STG_PITCH = 128
STG_WAVE = 32 * STG_PITCH
STG0 = 4 * TILE_BYTES
LDS_BYTES = STG0 + 8 * 2 * STG_WAVE
ZOFF = STG_WAVE
S_ZB = 4
S_QW = 5
S_X0, S_X1 = 6, 7
S_ZC = 8
S_T2 = 9

def f32bits(x):
    return struct.unpack("<I", struct.pack("<f", x))[0]

FR = 224
SWR, SRR, SOR, INVR = 240, 241, 242, 243
VD = 244
AB = 245
KB0 = 249
NF_ = 250
VB0 = 251
VL = 252
VT0, VT1 = 254, 255
SRD_Q, SRD_K, SRD_V, SRD_O = 12, 16, 20, 24
S_W1024 = 28
S_HEAD = [29, 30]
S_TOFF = 31
S_NC = 32
S_WH = 34
S_U = 35
S_STG = 36
S_SO = 37
S_ST = 38
S_OB = [39, 33]
S_W = 3

class RM:
    def __init__(self, S, Q, O, MT):
        self.S = [16 * b for b in S]
        self.Q = [16 * b for b in Q]
        self.O = [16 * b for b in O]
        self.MT = 16 * MT
        s0 = self.S[0]
        self.F = {1: s0 + 4, 2: s0 + 5, 3: s0 + 6, 4: s0 + 7, 5: VT1}
        self.QA = s0
        self.SW, self.SR, self.SO, self.INV = SWR, SRR, SOR, INVR
    def q(self, s):
        return self.Q[s // 4] + 4 * (s % 4)
    def half(self, H):
        return self.S[H >> 1] + 8 * (H & 1)
RMS = [RM([0,1,2,3,4,5,6,7], [8,9,10], [8,9,10,11,12,13], 13),
       RM([4,5,6,7,0,8,9,10], [1,2,3], [1,2,3,11,12,13], 13)]

class Gen:
    def __init__(self):
        self.L = []; self.vm = []; self.lg = []
    def e(self, s): self.L.append("    " + s)
    def c(self, s): self.L.append("    ; " + s)
    def label(self, s): self.L.append(s + ":")
    def vm_issue(self, tag): self.vm.append(tag)
    def vm_wait(self, tags):
        last = -1
        for i, t in enumerate(self.vm):
            if t in tags: last = i
        assert last >= 0, tags
        return min(63, len(self.vm) - 1 - last)
    def lg_issue(self, tag): self.lg.append(tag)
    def lg_wait(self, tag):
        last = -1
        for i, t in enumerate(self.lg):
            if t == tag: last = i
        assert last >= 0, tag
        return min(15, len(self.lg) - 1 - last)

def build(opt):
    g = Gen(); e = g.e
    NS, NF, LOOK = opt.nslot, opt.nf, opt.look
    assert FR + 4 * NF <= SWR
    assert NS == 4 and LDS_BYTES == 163840
    fl = {"Q": opt.fl_q, "K": opt.fl_k, "V": opt.fl_v, "O": opt.fl_o}
    fl["O0"] = opt.fl_o if opt.fl_oa is None else opt.fl_oa
    fl["O1"] = opt.fl_o if opt.fl_ob is None else opt.fl_ob
    fl = {k: ((" " + v.replace("+", " ")) if v else "") for k, v in fl.items()}
    c = (192 ** -0.5) * math.log2(math.e)
    CLIT = f"0x{f32bits(c):08x}"
    stamps = []
    def stamp(name):
        if not opt.stamp: return
        if opt.stamp == 3:
            i = len(stamps); stamps.append(name + "_t"); stamps.append(name + "_c")
            e(f"s_memrealtime s[{48+2*i}:{49+2*i}]")
            e(f"s_memtime s[{50+2*i}:{51+2*i}]")
            return
        i = len(stamps); stamps.append(name)
        e(f"{'s_memtime' if opt.stamp == 2 else 's_memrealtime'} s[{48+2*i}:{49+2*i}]")

    tiles = [(0, "K", j) for j in range(4)] + [(0, "V", j) for j in range(4)] + \
            [(1, "K", j) for j in range(4)] + [(1, "V", j) for j in range(4)]
    tid = {t: i for i, t in enumerate(tiles)}
    NT = len(tiles)
    st = dict(issued=0, free=[0, 1, 2, 3], slot={}, done=[], released=set(), synced=-1, qdone=[], cur_item=0)

    e("s_cmp_ge_u32 s2, 256")
    e("s_cbranch_scc1 L_end")
    if opt.stamp:
        e("s_memtime s[44:45]")
        e("s_load_dwordx2 s[40:41], s[0:1], 40")
    stamp("start")
    if opt.padto:
        e("s_memrealtime s[48:49]")
    e("s_load_dwordx4 s[4:7], s[0:1], 0")
    e("s_load_dwordx4 s[8:11], s[0:1], 16")
    e("v_lshrrev_b32 v1, 6, v0")
    e("v_and_b32 v2, 63, v0")
    e(f"v_readfirstlane_b32 s{S_W}, v1")
    e("v_and_b32 v3, 31, v2")
    e("v_lshrrev_b32 v4, 5, v2")
    e("v_lshrrev_b32 v5, 3, v2")
    e("v_lshl_add_u32 v5, v1, 3, v5")
    e("v_bfe_u32 v6, v2, 4, 1")
    e("v_lshlrev_b32 v6, 2, v6")
    e("v_lshl_or_b32 v6, v4, 1, v6")
    e("v_and_b32 v7, 1, v1")
    e("v_or_b32 v6, v6, v7")
    e("v_and_b32 v7, 7, v2")
    e("v_xor_b32 v6, v6, v7")
    e("v_mul_u32_u24 v5, 384, v5")
    e(f"v_lshl_add_u32 v{VD}, v6, 4, v5")
    e(f"s_lshl_b32 s{S_W1024}, s{S_W}, 10")
    if opt.headmap == 0:
        e(f"s_mul_i32 s{S_HEAD[0]}, s2, {HEAD_BYTES}")
        e(f"s_add_u32 s{S_HEAD[1]}, s{S_HEAD[0]}, {256*HEAD_BYTES}")
    else:
        e(f"s_mul_i32 s{S_HEAD[0]}, s2, {2*HEAD_BYTES}")
        e(f"s_add_u32 s{S_HEAD[1]}, s{S_HEAD[0]}, {HEAD_BYTES}")
    if opt.fakemem:
        e(f"s_and_b32 s{S_HEAD[0]}, s2, 7")
        e(f"s_mul_i32 s{S_HEAD[0]}, s{S_HEAD[0]}, {HEAD_BYTES}")
        e(f"s_mov_b32 s{S_HEAD[1]}, s{S_HEAD[0]}")
    if opt.rot:
        if opt.rot == 1:
            e("s_and_b32 s90, s2, 3")
        elif opt.rot == 2:
            e("s_lshr_b32 s90, s2, 3")
            e("s_and_b32 s90, s90, 3")
        elif opt.rot == 3:
            e("s_lshr_b32 s90, s2, 3")
            e("s_add_u32 s90, s90, s2")
            e("s_and_b32 s90, s90, 3")
        for t in range(4):
            e(f"s_add_u32 s{96+t}, s90, {t}")
            e(f"s_and_b32 s{96+t}, s{96+t}, 3")
            e(f"s_mul_i32 s{92+t}, s{96+t}, {TILE_BYTES}")
    e("s_waitcnt lgkmcnt(0)")
    for srd, sp in ((SRD_Q, 4), (SRD_K, 6), (SRD_V, 8), (SRD_O, 10)):
        e(f"s_mov_b32 s{srd}, s{sp}")
        e(f"s_mov_b32 s{srd+1}, s{sp+1}")
        e(f"s_mov_b32 s{srd+2}, {TOTAL_BYTES}")
        e(f"s_mov_b32 s{srd+3}, 0x00020000")

    e(f"s_lshl_b32 s{S_T2}, s{S_W}, 13")
    e(f"s_add_u32 s{S_STG}, s{S_T2}, {STG0}")
    e(f"s_add_u32 s{S_ZB}, s{S_STG}, {ZOFF}")
    e(f"s_mul_i32 s{S_QW}, s{S_W}, {24*384}")
    e(f"s_and_b32 s{S_X0}, s{S_W}, 1")
    e(f"s_lshl_b32 s{S_X0}, s{S_X0}, 4")
    e(f"s_xor_b32 s{S_X1}, s{S_X0}, 16")
    def q_dma(h, c, i, zone):
        e(f"v_xor_b32 v{VT0}, s{S_X0 if i % 2 == 0 else S_X1}, v{VD}")
        e(f"s_add_u32 m0, s{zone}, {i*1024}")
        e(f"s_add_u32 s{S_TOFF}, s{S_HEAD[h]}, s{S_QW}")
        e(f"s_add_u32 s{S_TOFF}, s{S_TOFF}, {i*3072 + c*128}")
        e(f"buffer_load_dwordx4 v{VT0}, s[{SRD_Q}:{SRD_Q+3}], s{S_TOFF} offen{fl['Q']} lds")
        g.vm_issue(("Qd", h, c))
    def q_rd(h, c, zone, r0):
        rm = RMS[h]
        e(f"s_waitcnt vmcnt({g.vm_wait([('Qd', h, c)])})")
        e(f"v_add_u32 v{r0}, s{zone}, v{KB0}")
        for j in range(1, 4):
            e(f"v_xor_b32 v{r0+j}, {32*j}, v{r0}")
        for j in range(4):
            sidx = 4 * c + j
            e(f"ds_read_b128 v[{rm.q(sidx)}:{rm.q(sidx)+3}], v{r0+j}")
            g.lg_issue(("q", h, c))
    pend = []
    pend_t = {}
    def emit_dma():
        n, b = pend.pop(0)
        h, kind, t = tiles[n]
        slot = st["slot"][n]
        srd = {"Q": SRD_Q, "K": SRD_K, "V": SRD_V}[kind]
        e(f"s_add_u32 m0, s{S_W1024}, {slot*TILE_BYTES + b*8064}")
        if opt.rot:
            e(f"s_add_u32 s{S_TOFF}, s{S_HEAD[h]}, s{92+t}")
        else:
            e(f"s_add_u32 s{S_TOFF}, s{S_HEAD[h]}, {t*TILE_BYTES}")
        e(f"buffer_load_dwordx4 v{VD}, s[{srd}:{srd+3}], s{S_TOFF} offen offset:{128*b}{fl[kind]} lds")
        g.vm_issue(("T", n))
    def issue_next(now=True):
        n = st["issued"]
        slot = st["free"].pop(0)
        st["slot"][n] = slot
        st["issued"] += 1
        for b in range(3):
            pend.append((n, b))
            pend_t[(n, b)] = st["cur_item"] + NF - 1
        if now:
            while pend: emit_dma()
    def sync(n):
        assert n == st["synced"] + 1, (n, st["synced"])
        assert n < st["issued"], f"tile {n} not issued before its sync"
        st["synced"] = n
        h, kind, t = tiles[n]
        while any(p[0] <= n for p in pend):
            emit_dma()
        g.c(f"---- sync tile {n} ({kind}{t} head {h})")
        if not opt.nowait:
            e(f"s_waitcnt vmcnt({g.vm_wait([('T', n)])})")
        if not (opt.nobar and st.get("initems")):
            e("s_barrier")
        if opt.stamp and (h, kind, t) in STAMP_AT:
            stamp(f"{kind}{t}{'AB'[h]}")
        if opt.wbl2 and (h, kind, t) == (1, "V", opt.wbl2_at):
            assert opt.wbl2_at == 3
            e(f"s_cmp_lt_u32 s2, {8*opt.wbl2}")
            e("s_cbranch_scc0 L_nowb")
            e(f"s_cmp_eq_u32 s{S_W}, 0")
            e("s_cbranch_scc0 L_nowb")
            e("buffer_wbl2 sc1")
            g.label("L_nowb")
        for d in st["done"]:
            if d not in st["released"]:
                st["released"].add(d)
                if d == "ZC": st["free"] += [2, 3]
                else: st["free"].append(st["slot"][d])
        lk = LOOK
        if opt.looks:
            lk = int(opt.looks[n])
        while st["issued"] < NT and st["free"] and st["issued"] - (n + 1) < lk:
            issue_next(now=(opt.dmagap == 0 or not st.get("initems")))
        if opt.stamp and opt.stampdma and (h, kind, t) in STAMP_AT:
            stamp(f"d{kind}{t}{'AB'[h]}")
    if opt.stamp == 3:
        STAMP_AT = {(0,"K",0),(0,"V",0),(0,"V",2),(1,"K",0),(1,"K",2),(1,"V",0)}
    elif opt.stampdma:
        STAMP_AT = {(0,"K",1),(0,"K",2),(0,"V",1),(0,"V",3),(1,"Q",3),(1,"K",0),(1,"K",1),(1,"K",2),(1,"K",3),(1,"V",0)}
    else:
      STAMP_AT = {(0,"Q",0),(0,"K",0),(0,"K",1),(0,"K",3),(0,"V",0),(0,"V",1),(0,"V",2),(0,"V",3),(1,"K",0),(1,"K",1),(1,"K",3),(1,"V",0),(1,"V",1),(1,"V",3)}

    issue_next()
    for i in range(4): q_dma(0, 0, i, S_STG)

    e("v_bfe_u32 v5, v3, 1, 1")
    e("v_lshlrev_b32 v5, 2, v5")
    e("v_bfe_u32 v6, v3, 2, 1")
    e("v_lshl_or_b32 v5, v6, 1, v5")
    e("v_bfe_u32 v6, v3, 3, 1")
    e("v_or_b32 v5, v5, v6")
    e("v_xor_b32 v5, v5, v4")
    e("v_lshlrev_b32 v5, 4, v5")
    e(f"v_lshl_add_u32 v{KB0}, v3, 7, v5")
    e("v_bfe_u32 v5, v2, 2, 2")
    e("v_lshl_add_u32 v6, v4, 2, v5")
    e("v_lshlrev_b32 v6, 7, v6")
    e("v_bfe_u32 v7, v2, 4, 1")
    e("v_lshlrev_b32 v7, 1, v7")
    e("v_bfe_u32 v8, v2, 1, 1")
    e("v_or_b32 v7, v7, v8")
    e("v_bfe_u32 v8, v2, 3, 1")
    e("v_lshlrev_b32 v8, 2, v8")
    e("v_lshl_or_b32 v8, v4, 1, v8")
    e("v_xor_b32 v7, v7, v8")
    e("v_lshl_add_u32 v6, v7, 4, v6")
    e("v_and_b32 v7, 1, v2")
    e(f"v_lshl_add_u32 v{VB0}, v7, 3, v6")
    e(f"s_mov_b32 s{S_NC}, 0x{f32bits(-c):08x}")
    e(f"s_mul_i32 s{S_SO}, s{S_W}, {32*384}")
    e(f"s_add_u32 s{S_OB[0]}, s{S_HEAD[0]}, s{S_SO}")
    e(f"s_add_u32 s{S_OB[1]}, s{S_HEAD[1]}, s{S_SO}")
    e("v_and_b32 v5, 7, v3")
    e(f"v_lshlrev_b32 v{SWR}, 7, v3")
    e(f"v_lshl_add_u32 v{SWR}, v5, 4, v{SWR}")
    e(f"v_lshl_add_u32 v{SWR}, v4, 3, v{SWR}")
    e(f"v_add_u32 v{SWR}, s{S_STG}, v{SWR}")
    e(f"v_lshlrev_b32 v{SRR}, 4, v2")
    e(f"v_add_u32 v{SRR}, s{S_STG}, v{SRR}")
    e("v_lshrrev_b32 v5, 3, v2")
    e("v_and_b32 v6, 7, v2")
    e("v_xor_b32 v6, v6, v5")
    e(f"v_mul_u32_u24 v{SOR}, 384, v5")
    e(f"v_lshl_add_u32 v{SOR}, v6, 4, v{SOR}")
    if opt.stamp != 3: stamp("issued")

    def set_ab(n, r0=AB):
        h, kind, t = tiles[n]
        base = st["slot"][n] * TILE_BYTES
        if kind == "V":
            e(f"v_add_u32 v{r0}, {base}, v{VB0}")
            e(f"v_xor_b32 v{r0+1}, 16, v{r0}")
            e(f"v_xor_b32 v{r0+2}, 64, v{r0}")
            e(f"v_xor_b32 v{r0+3}, 0x50, v{r0}")
        else:
            e(f"v_add_u32 v{r0}, {base}, v{KB0}")
            if kind == "Q":
                e(f"v_add_u32 v{r0}, s{S_U}, v{r0}")
            for j in range(1, 4):
                e(f"v_xor_b32 v{r0+j}, {32*j}, v{r0}")

    lblc = [0]
    def q_read(n, r0):
        h, kind, j = tiles[n]
        rm = RMS[h]
        lblc[0] += 1
        lab = f"L_q{lblc[0]}"
        if opt.rot:
            e(f"s_cmp_eq_u32 s{S_WH}, s{96+j}")
        else:
            e(f"s_cmp_eq_u32 s{S_WH}, {j}")
        e(f"s_cbranch_scc0 {lab}")
        set_ab(n, r0)
        for s in range(12):
            e(f"ds_read_b128 v[{rm.q(s)}:{rm.q(s)+3}], v{r0 + (s & 3)} offset:{(s >> 2)*8192}")
        if not st.get("initems"):
            e("s_waitcnt lgkmcnt(0)")
            g.label(lab)
            st["done"].append(n)
        else:
            g.label(lab)
            st["qdone"].append((n, st["cur_item"] + NF + 1))

    def max_tile(rm, T):
        b = rm.S[T]; m = rm.MT + T
        out = [f"v_max3_f32 v{m}, v{b}, v{b+1}, v{b+2}"]
        for k in range(6):
            out.append(f"v_max3_f32 v{m}, v{m}, v{b+3+2*k}, v{b+4+2*k}")
        out.append(f"v_max_f32 v{m}, v{m}, v{b+15}")
        out.append(f"v_mul_f32 v{m}, s{S_NC}, v{m}")
        return out
    def exp_ops(rm, T, nreg):
        b = rm.S[T]
        Fm = lambda i: f"v_fmamk_f32 v{b+i}, v{b+i}, {CLIT}, v{nreg}"
        Ex = lambda i: f"v_exp_f32 v{b+i}, v{b+i}"
        out = [Fm(0), Fm(1)]
        for i in range(16):
            out.append(Ex(i))
            if i + 2 < 16: out.append(Fm(i + 2))
        return out
    def prod_half(rm, H, first=False):
        b = rm.half(H); T = H >> 1
        out = []
        if T <= 5:
            fr = rm.F[T] if T >= 1 else VT0
            for i in range(8):
                out.append(f"v_mul_f32 v{b+i}, v{fr}, v{b+i}")
        adds = []
        for i in range(8):
            if first and i < 2:
                adds.append(f"v_mov_b32 v{VL+i}, v{b+i}")
            else:
                adds.append(f"v_add_f32 v{VL+(i&1)}, v{VL+(i&1)}, v{b+i}")
        cv = [f"v_cvt_pk_bf16_f32 v{b+j}, v{b+2*j}, v{b+2*j+1}" for j in range(4)]
        for j in range(4):
            out += [adds[2*j], adds[2*j+1], cv[j]]
        return out
    def sm_head(rm):
        m = rm.MT
        out = ["s_nop 7", "s_nop 3"]
        out += max_tile(rm, 7)
        out += [f"v_min3_f32 v{NF_}, v{m}, v{m+1}, v{m+2}",
                f"v_min3_f32 v{NF_}, v{NF_}, v{m+3}, v{m+4}",
                f"v_min3_f32 v{NF_}, v{NF_}, v{m+5}, v{m+6}",
                f"v_min_f32 v{NF_}, v{NF_}, v{m+7}",
                f"v_mov_b32 v{VT0}, v{NF_}", "s_nop 1",
                f"v_permlane32_swap_b32 v{NF_}, v{VT0}", "s_nop 1",
                f"v_min_f32 v{NF_}, v{NF_}, v{VT0}",
                f"v_sub_f32 v{VT0}, v{NF_}, v{m}",
                f"v_exp_f32 v{VT0}, v{VT0}",
                f"v_sub_f32 v{m+5}, v{NF_}, v{m+5}"]
        out += prod_half(rm, 0, first=True)
        out += [f"v_exp_f32 v{rm.F[5]}, v{m+5}"]
        for T in range(1, 5):
            out.append(f"v_sub_f32 v{rm.F[T]}, v{NF_}, v{m+T}")
        for T in range(1, 5):
            out.append(f"v_exp_f32 v{rm.F[T]}, v{rm.F[T]}")
        out.append("s_nop 0")
        return out
    def inv_l(rm):
        return [f"v_add_f32 v{VL}, v{VL}, v{VL+1}",
                f"v_mov_b32 v{VT0}, v{VL}", "s_nop 1",
                f"v_permlane32_swap_b32 v{VL}, v{VT0}", "s_nop 1",
                f"v_add_f32 v{VL}, v{VL}, v{VT0}",
                f"v_rcp_f32 v{rm.INV}, v{VL}"]
    def ep_addr(rm):
        SW, SR, SO = rm.SW, rm.SR, rm.SO
        return [f"v_mbcnt_lo_u32_b32 v{VT0}, -1, 0",
                f"v_mbcnt_hi_u32_b32 v{VT0}, -1, v{VT0}",
                f"v_and_b32 v{SR}, 31, v{VT0}",
                f"v_mul_u32_u24 v{SW}, {STG_PITCH}, v{SR}",
                f"v_lshrrev_b32 v{SR}, 5, v{VT0}",
                f"v_lshl_add_u32 v{SW}, v{SR}, 3, v{SW}",
                f"v_add_u32 v{SW}, s{S_STG}, v{SW}",
                f"v_lshrrev_b32 v{SO}, 3, v{VT0}",
                f"v_mul_u32_u24 v{SR}, {STG_PITCH}, v{SO}",
                f"v_and_b32 v{VT0}, 7, v{VT0}",
                f"v_lshl_add_u32 v{SR}, v{VT0}, 4, v{SR}",
                f"v_add_u32 v{SR}, s{S_STG}, v{SR}",
                f"v_mul_u32_u24 v{SO}, 384, v{SO}",
                f"v_lshl_add_u32 v{SO}, v{VT0}, 4, v{SO}"]
    def ep_scale(h, b, dest=None):
        rm = RMS[h]
        ops = []; pairs = []
        for dd in range(2):
            R = rm.O[2*b + dd]
            for gq in range(4):
                B = R + 4 * gq
                D = B if dest is None else dest + 2 * (4*dd + gq)
                for i in range(4):
                    ops.append(("v", f"v_mul_f32 v{B+i}, v{rm.INV}, v{B+i}"))
                ops.append(("v", f"v_cvt_pk_bf16_f32 v{D}, v{B}, v{B+1}"))
                ops.append(("v", f"v_cvt_pk_bf16_f32 v{D+1}, v{B+2}, v{B+3}"))
                pairs.append(D)
        return ops, pairs
    def ep_write(h, b, pairs, off=0):
        out = []
        o = f" offset:{off}" if off else ""
        for k, D in enumerate(pairs):
            if k == 0:
                out.append([("dsw", f"ds_write_b64 v{SWR}, v[{D}:{D+1}]{o}", ("ow", h, b))])
            else:
                out.append([("v", f"v_xor_b32 v{VT0}, {16*k}, v{SWR}"),
                            ("dsw", f"ds_write_b64 v{VT0}, v[{D}:{D+1}]{o}", ("ow", h, b))])
        return out
    def ep_rd(h, b, i, T, off=0):
        return ("dsr", f"ds_read_b128 v[{T}:{T+3}], v{SRR} offset:{off + i*1024}", ("or", h, b, i))
    def ep_st(h, b, i, T):
        return [("wl", ("or", h, b, i)),
                ("s", f"s_add_u32 s{S_ST}, s{S_OB[h]}, {3072*i}"),
                ("st", f"buffer_store_dwordx4 v[{T}:{T+3}], v{SOR}, s[{SRD_O}:{SRD_O+3}], s{S_ST} offen offset:{128*b}{fl['O%d' % h]}", ("O", h))]
    def interleave_writes(ops, pairs, h, b, off=0):
        out = []
        w = ep_write(h, b, pairs, off)
        for k in range(8):
            out += ops[6*k:6*k+6] + w[k]
        return out
    def emit_op(op):
        if isinstance(op, str):
            e(op); return
        k = op[0]
        if k in ("v", "s"): e(op[1])
        elif k in ("dsw", "dsr"): e(op[1]); g.lg_issue(op[2])
        elif k == "wl": e(f"s_waitcnt lgkmcnt({g.lg_wait(op[1])})")
        elif k == "st":
            if opt.skip_o is not None and op[2][1] in opt.skip_o: return
            e(op[1]); g.vm_issue(op[2])
        elif k == "sync": sync(op[1])
        elif k == "qdma": q_dma(op[1], op[2], op[3], op[4])
        elif k == "qrd": q_rd(op[1], op[2], op[3], op[4])
        elif k == "rel": st["done"].append(op[1])
        elif k == "stamp": stamp(op[1])
        else: raise ValueError(op)

    items = []
    def spread(ops, lo, hi):
        n = hi - lo
        assert n > 0
        for k, op in enumerate(ops):
            idx = lo + (k * n) // len(ops)
            if k > 0 and isinstance(op, tuple) and op[0] == "dsw" and f"v{VT0}," in op[1]:
                idx = last_idx
            items[idx]["post"].append(op)
            last_idx = idx

    base = {}
    for h in range(2):
        rm = RMS[h]
        base[(h, "K")] = len(items)
        for t in range(4):
            n = tid[(h, "K", t)]
            korder = [(u, s) for u in range(2) for s in range(12)]
            if h == 0 and t == 0:
                korder = [(u, s) for cb in range(3) for u in range(2) for s in range(4*cb, 4*cb+4)]
            for u, s in korder:
                if True:
                    d = rm.S[2 * t + u]
                    items.append(dict(tile=n,
                        reads=[f"ds_read_b128 v[{{fr}}:{{fr3}}], v{AB + (s & 3)} offset:{(s >> 2)*8192 + u*4096}"],
                        mfma=f"v_mfma_f32_32x32x16_bf16 v[{d}:{d+15}], v[{{fr}}:{{fr3}}], v[{rm.q(s)}:{rm.q(s)+3}], " + ("0" if s == 0 else f"v[{d}:{d+15}]"),
                        pre=[], post=[]))
        base[(h, "V")] = len(items)
        for t in range(4):
            n = tid[(h, "V", t)]
            if t < 3:
                order = [(ks, dt) for ks in range(4) for dt in range(6)]
            elif h == 1 and opt.dtmajor:
                order = [(ks, dt) for b in (2, 1, 0) for dt in (2*b, 2*b+1) for ks in range(4)]
            else:
                order = [(ks, dt) for ks in range(2) for dt in range(6)] + \
                        [(ks, dt) for b in (2, 1, 0) for dt in (2*b, 2*b+1) for ks in (2, 3)]
            for ks, dt in order:
                d = rm.O[dt]
                H = 4 * t + ks
                pk = rm.half(H)
                first = (t == 0 and ks == 0)
                items.append(dict(tile=n,
                    reads=[f"ds_read_b64_tr_b16 v[{{fr}}:{{fr1}}], v{AB + 2*(dt & 1)} offset:{(dt >> 1)*8192 + ks*2048}",
                           f"ds_read_b64_tr_b16 v[{{fr2}}:{{fr3}}], v{AB + 2*(dt & 1) + 1} offset:{(dt >> 1)*8192 + ks*2048 + 1024}"],
                    mfma=f"v_mfma_f32_32x32x16_bf16 v[{d}:{d+15}], v[{{fr}}:{{fr3}}], v[{pk}:{pk+3}], " + ("0" if first else f"v[{d}:{d+15}]"),
                    pre=[], post=[]))
    NI = len(items)
    for h in range(2):
        rm = RMS[h]
        K0 = base[(h, "K")]; V0 = base[(h, "V")]
        comp = [12 * T + 11 for T in range(8)]
        if h == 0:
            comp[0] = 19; comp[1] = 23
        for T in range(7):
            lo = K0 + comp[T] + 5
            spread(max_tile(rm, T), lo, lo + 4)
        for T in range(6):
            lo = K0 + comp[T] + 9
            spread(exp_ops(rm, T, rm.MT + T), lo, lo + 12)
        items[V0]["pre"] += sm_head(rm)
        for H in range(1, 12):
            spread(prod_half(rm, H), V0 + 6*(H-1), V0 + 6*H - 1)
        e6 = exp_ops(rm, 6, NF_); e7 = exp_ops(rm, 7, NF_)
        if h == 1 and opt.dtmajor:
            spread(e6, V0 + 0, V0 + 48)
            spread(e7, V0 + 6, V0 + 56)
        else:
            spread(e6, V0 + 0, V0 + 58)
            spread(e7, V0 + 6, V0 + 64)
    def at(idx, ops):
        items[idx]["post"] += ops
    def spread_groups(groups, lo, hi):
        n = hi - lo
        for k, grp in enumerate(groups):
            items[lo + (k * n) // len(groups)]["post"] += grp
    for h in range(2):
        rm = RMS[h]
        V0 = base[(h, "V")]
        if h == 0 or not opt.dtmajor:
            spread(prod_half(rm, 12), V0 + 66, V0 + 71)
            spread(prod_half(rm, 13), V0 + 72, V0 + 77)
            spread(prod_half(rm, 14), V0 + 72, V0 + 83)
            spread(prod_half(rm, 15), V0 + 73, V0 + 83)
            at(V0 + 84, inv_l(rm))
        else:
            spread(prod_half(rm, 12), V0 + 52, V0 + 62)
            spread(prod_half(rm, 13), V0 + 56, V0 + 66)
            spread(prod_half(rm, 14), V0 + 60, V0 + 70)
            spread(prod_half(rm, 15), V0 + 62, V0 + 71)
            at(V0 + 72, inv_l(rm))
    rmA, rmB = RMS
    V0 = base[(0, "V")]; K1 = base[(1, "K")]; V1 = base[(1, "V")]
    T0, T1 = 216, 220
    ops2, p2 = ep_scale(0, 2)
    spread(interleave_writes(ops2, p2, 0, 2), V0 + 91, K1 + 8)
    ops1, p1 = ep_scale(0, 1)
    spread(interleave_writes(ops1, p1, 0, 1, ZOFF), K1 + 8, K1 + 19)
    def rdst(h, b, i, T, ir, ist, off=0):
        at(ir, [ep_rd(h, b, i, T, off)])
        at(ist, ep_st(h, b, i, T))
    H2 = rmB.half(2) + 4; H3 = rmB.half(3) + 4; H4 = rmB.half(4) + 4; H5 = rmB.half(5) + 4
    sched = [int(x) for x in opt.osched.split(",")]
    ready = {H2: V1 + 11, H3: V1 + 17, H4: V1 + 23, H5: V1 + 29}
    busy = {T0: -1, T1: -1, H2: -1, H3: -1, H4: -1, H5: -1}
    tmap = {}
    for it0 in sorted(sched):
        it = K1 + it0
        cands = [T0, T1] if it0 < 98 else [t for t in (H2, H3, H4, H5) if it - 5 > ready[t]]
        cands = [t for t in cands if busy[t] + 2 < it - 5]
        assert cands, it0
        tmap[it0] = cands[0]; busy[cands[0]] = it
    assert len(set(sched)) == 12
    def temp_for(it, k): return tmap[it - K1]
    def min_ok(it, T): pass
    for k in range(4):
        it = K1 + sched[k]; T = temp_for(it, k); min_ok(it, T)
        rdst(0, 2, k, T, it - 5, it, 0)
    b0_lo = K1 + max(sched[3] - 4, 19)
    ops0, p0 = ep_scale(0, 0)
    spread(ops0, K1 + 19, K1 + 31)
    b0_lo = max(b0_lo, K1 + 31)
    spread_groups(ep_write(0, 0, p0), b0_lo, b0_lo + 8)
    assert b0_lo + 8 <= K1 + 58
    for k in range(4):
        it = K1 + sched[4 + k]; T = temp_for(it, k); min_ok(it, T)
        rdst(0, 1, k, T, it - 5, it, ZOFF)
    for k in range(4):
        it = K1 + sched[8 + k]; T = temp_for(it, k); min_ok(it, T)
        assert it - 5 >= b0_lo + 8
        rdst(0, 0, k, T, it - 5, it, 0)
    assert K1 + sched[11] < V1 + 80
    K0 = base[(0, "K")]
    for i in range(4): at(K0 + 1 + i, [("qdma", 0, 2, i, S_STG)])
    at(K0 + 5, [("qrd", 0, 1, S_ZB, 176)])
    items[K0 + 8]["pre"] += [("wl", ("q", 0, 1))]
    at(K0 + 13, [("qrd", 0, 2, S_STG, 176)])
    items[K0 + 16]["pre"] += [("wl", ("q", 0, 2))]
    for i in range(4): at(K0 + opt.qb0_at + opt.qb_sp*i, [("qdma", 1, 0, i, S_STG)])
    for i in range(4): at(K0 + opt.qb1_at + opt.qb_sp*i, [("qdma", 1, 1, i, S_ZB)])
    at(V0 + 24, [("qrd", 1, 0, S_STG, rmA.QA)])
    at(V0 + 29, [("wl", ("q", 1, 0))])
    for i in range(4): at(V0 + 29 + i, [("qdma", 1, 2, i, S_STG)])
    at(V0 + 36, [("qrd", 1, 1, S_ZB, rmA.QA)])
    at(V0 + opt.qc2_at, [("qrd", 1, 2, S_STG, rmA.QA)])
    items[K1 + 0]["pre"] += [("wl", ("q", 1, 0)), ("wl", ("q", 1, 1))]
    items[K1 + 8]["pre"] += [("wl", ("q", 1, 2))]
    if opt.stamp != 3:
        at(V0 + 95, [("stamp", "endA")])
    TB = [rmB.S[1] + 4*k for k in range(4)] + [rmB.S[2] + 4*k for k in range(4)] + [rmB.S[3] + 4*k for k in range(4)]
    tail = []
    if opt.dtmajor:
        c2 = V1 + 79; c1 = V1 + 87
    else:
        c2 = V1 + 87; c1 = V1 + 91
    o2, q2 = ep_scale(1, 2); o1, q1 = ep_scale(1, 1); o0, q0 = ep_scale(1, 0)
    A2 = interleave_writes(o2, q2, 1, 2)
    R2 = [ep_rd(1, 2, i, TB[i]) for i in range(4)]
    S2 = sum([ep_st(1, 2, i, TB[i]) for i in range(4)], [])
    A1 = interleave_writes(o1, q1, 1, 1, ZOFF)
    R1 = [ep_rd(1, 1, i, TB[4+i], ZOFF) for i in range(4)]
    S1 = sum([ep_st(1, 1, i, TB[4+i]) for i in range(4)], [])
    A0 = interleave_writes(o0, q0, 1, 0)
    R0 = [ep_rd(1, 0, i, TB[8+i]) for i in range(4)]
    S0 = sum([ep_st(1, 0, i, TB[8+i]) for i in range(4)], [])
    assert opt.dtmajor
    spread(A2, c2 + 4, c2 + 12)
    at(c2 + 12, R2)
    k1 = 28
    spread(A1[:27], c1 + 4, V1 + 96)
    tail = A1[27:] + S2[:6] + R1 + A0[:27] + S2[6:] + A0[27:] + S1 + R0 + S0
    def fmt(s, i):
        fr = FR + 4 * (i % NF)
        return s.format(fr=fr, fr1=fr + 1, fr2=fr + 2, fr3=fr + 3)
    def issue_reads(j):
        it = items[j]
        if j == 0 or items[j - 1]["tile"] != it["tile"]:
            sync(it["tile"])
            set_ab(it["tile"])
        for r in it["reads"]:
            if opt.memonly == 2:
                g.lg_issue(("f", j)); g.lg.pop(); g.lg.append(("f", j)); continue
            e(fmt(r, j)); g.lg_issue(("f", j))
    st["initems"] = True
    sync(0)
    for i in range(4): q_dma(0, 1, i, S_ZB)
    q_rd(0, 0, S_STG, 176)
    set_ab(0)
    first_done = True
    for j in range(NF - 1):
        for r in items[j]["reads"]:
            e(fmt(r, j)); g.lg_issue(("f", j))
    items[0]["pre"] = [("wl", ("q", 0, 0))] + items[0]["pre"]
    def dma_delay(n):
        if n <= 1: return 0
        if opt.delays: return int(opt.delays[n], 36)
        return opt.dmadelay
    st["initems"] = True
    last_dma = opt.k1_at - opt.dmagap
    for i, it in enumerate(items):
        if opt.prio and i % 6 == 0:
            ph = (i + NF - 1) % 24
            if ph < 6:
                pass
        if opt.prio:
            ph = (i + NF - 1) % 24
            if ph % 6 == 0:
                e(f"s_setprio {3 - ph // 6}")
        st["cur_item"] = i
        for (qn, qi) in list(st["qdone"]):
            if i >= qi:
                st["done"].append(qn); st["qdone"].remove((qn, qi))
        if not opt.memonly:
            for op in it["pre"]: emit_op(op)
        e(f"s_waitcnt lgkmcnt({g.lg_wait(('f', i))})")
        if not opt.memonly:
            e(fmt(it["mfma"], i))
        if i + 1 == NI or items[i + 1]["tile"] != it["tile"]:
            st["done"].append(it["tile"])
        j = i + NF - 1
        if j < NI: issue_reads(j)
        if pend and i - last_dma >= opt.dmagap and (i + NF - 1) >= pend_t[pend[0]] + dma_delay(pend[0][0]):
            emit_dma(); last_dma = i
        for op in it["post"]:
            if opt.memonly and (isinstance(op, str) or op[0] == "v"):
                if isinstance(op, str) and ("mbcnt" in op or "u32" in op or "v_and" in op or "v_lshr" in op):
                    emit_op(op)
                continue
            emit_op(op)
    assert not pend
    stamp("mfma_done")
    for op in tail:
        if opt.memonly and op[0] == "v": continue
        emit_op(op)
    if opt.stamp != 3: stamp("ep_done")
    if opt.padto:
        e("s_waitcnt vmcnt(0)")
        g.label("L_spin")
        e("s_sleep 2")
        e("s_memrealtime s[50:51]")
        e("s_waitcnt lgkmcnt(0)")
        e("s_sub_u32 s52, s50, s48")
        e(f"s_cmp_lt_u32 s52, {opt.padto}")
        e("s_cbranch_scc1 L_spin")
    if opt.stamp:
        e("s_waitcnt vmcnt(0)")
        stamp("end")
        e("s_memtime s[46:47]")
        e("s_waitcnt lgkmcnt(0)")
        e("s_mov_b32 s42, 0x10000000")
        e("s_mov_b32 s43, 0x00020000")
        e("s_lshl_b32 s33, s2, 3")
        e(f"s_add_u32 s33, s33, s{S_W}")
        e("s_lshl_b32 s33, s33, 8")
        e("v_mov_b32 v1, 0")
        for i in range(len(stamps)):
            e(f"v_mov_b32 v0, s{48+2*i}")
            e(f"buffer_store_dword v0, v1, s[40:43], s33 offen offset:{4*i}")
        e("s_sub_u32 s46, s46, s44")
        e("v_mov_b32 v0, s46")
        e(f"buffer_store_dword v0, v1, s[40:43], s33 offen offset:{4*len(stamps)}")
        print("nstamps", len(stamps), "stamps:", " ".join(stamps), file=sys.stderr)
        assert 48 + 2 * len(stamps) <= 102
    g.label("L_end")
    e("s_endpgm")

    out = HEADER
    out += f"; @launch grid=(256,1,1) block=(512,1,1) lds={LDS_BYTES}\n"
    out += '.amdgcn_target "amdgcn-amd-amdhsa--gfx950"\n.text\n'
    out += f".globl {NAME}\n.p2align 8\n.type {NAME},@function\n{NAME}:\n"
    out += "\n".join(g.L) + "\n"
    out += f""".section .rodata,"a"
.p2align 6
.amdhsa_kernel {NAME}
  .amdhsa_next_free_vgpr 256
  .amdhsa_next_free_sgpr {102 if (opt.stamp or opt.padto or opt.rot) else 48}
  .amdhsa_accum_offset 256
  .amdhsa_group_segment_fixed_size 0
  .amdhsa_kernarg_size 48
  .amdhsa_user_sgpr_count 2
  .amdhsa_user_sgpr_kernarg_segment_ptr 1
  .amdhsa_system_sgpr_workgroup_id_x 1
.end_amdhsa_kernel
"""
    return out

if __name__ == "__main__":
    ap = argparse.ArgumentParser()
    ap.add_argument("-o", default="standalone__mha_softmax__near_ridge.s")
    ap.add_argument("--nslot", type=int, default=4)
    ap.add_argument("--nf", type=int, default=4)
    ap.add_argument("--look", type=int, default=2)
    ap.add_argument("--pro", type=int, default=3)
    ap.add_argument("--fl_q", default="")
    ap.add_argument("--fl_k", default="")
    ap.add_argument("--fl_v", default="")
    ap.add_argument("--fl_o", default="")
    ap.add_argument("--headmap", type=int, default=0)
    ap.add_argument("--stamp", type=int, default=0)
    ap.add_argument("--dmagap", type=int, default=3)
    ap.add_argument("--prio", type=int, default=0)
    ap.add_argument("--memonly", type=int, default=0)
    ap.add_argument("--fl_oa", default=None)
    ap.add_argument("--fl_ob", default=None)
    ap.add_argument("--wbl2", type=int, default=0)
    ap.add_argument("--wbl2_at", type=int, default=3)
    ap.add_argument("--fakemem", type=int, default=0)
    ap.add_argument("--badstg", type=int, default=0)
    ap.add_argument("--nowait", type=int, default=0)
    ap.add_argument("--stampdma", type=int, default=0)
    ap.add_argument("--rot", type=int, default=0)
    ap.add_argument("--skip_o", type=lambda x: [int(c) for c in x], default=None)
    ap.add_argument("--nobar", type=int, default=0)
    ap.add_argument("--dtmajor", type=int, default=1)
    ap.add_argument("--korder", default="u")
    ap.add_argument("--qc2_at", type=int, default=84)
    ap.add_argument("--k1_at", type=int, default=6)
    ap.add_argument("--qb0_at", type=int, default=50)
    ap.add_argument("--qb1_at", type=int, default=74)
    ap.add_argument("--qb_sp", type=int, default=4)
    ap.add_argument("--looks", default="")
    ap.add_argument("--dmadelay", type=int, default=0)
    ap.add_argument("--delays", default="")
    ap.add_argument("--osched", default="14,22,30,38,50,62,74,86,114,126,138,150")
    ap.add_argument("--padto", type=int, default=0)
    opt = ap.parse_args()
    open(opt.o, "w").write(build(opt))
```

```python
import sys, math, struct, argparse

HEADER = """; Kernarg layout for this problem (48 bytes, ptrs only, base s[0:1]):
;   offset   0: d_in[0] q  shape=(16, 32, 256, 192) dtype=bfloat16 strides=(3145728, 98304, 384, 2) contiguous=True
;   offset   8: d_in[1] k  shape=(16, 32, 256, 192) dtype=bfloat16 strides=(3145728, 98304, 384, 2) contiguous=True
;   offset  16: d_in[2] v  shape=(16, 32, 256, 192) dtype=bfloat16 strides=(3145728, 98304, 384, 2) contiguous=True
"""
NAME = "standalone__mha_softmax__near_ridge_kernel"
HEAD_BYTES = 256 * 384
TILE_BYTES = 64 * 384
TOTAL_BYTES = 512 * HEAD_BYTES
STG_PITCH = 128
STG_WAVE = 32 * STG_PITCH
STG0 = 4 * TILE_BYTES
LDS_BYTES = STG0 + 8 * 2 * STG_WAVE
ZOFF = STG_WAVE
S_ZB = 4
S_QW = 5
S_X0, S_X1 = 6, 7
S_ZC = 8
S_T2 = 9

def f32bits(x):
    return struct.unpack("<I", struct.pack("<f", x))[0]

FR = 224
SWR, SRR, SOR, INVR = 240, 241, 242, 243
VD = 244
AB = 245
KB0 = 249
NF_ = 250
VB0 = 251
VL = 252
VT0, VT1 = 254, 255
SRD_Q, SRD_K, SRD_V, SRD_O = 12, 16, 20, 24
S_W1024 = 28
S_HEAD = [29, 30]
S_TOFF = 31
S_NC = 32
S_WH = 34
S_U = 35
S_STG = 36
S_SO = 37
S_ST = 38
S_OB = [39, 33]
S_W = 3

class RM:
    def __init__(self, S, Q, O, MT):
        self.S = [16 * b for b in S]
        self.Q = [16 * b for b in Q]
        self.O = [16 * b for b in O]
        self.MT = 16 * MT
        s0 = self.S[0]
        self.F = {1: s0 + 4, 2: s0 + 5, 3: s0 + 6, 4: s0 + 7, 5: VT1}
        self.QA = s0
        self.SW, self.SR, self.SO, self.INV = SWR, SRR, SOR, INVR
    def q(self, s):
        return self.Q[s // 4] + 4 * (s % 4)
    def half(self, H):
        return self.S[H >> 1] + 8 * (H & 1)
RMS = [RM([0,1,2,3,4,5,6,7], [8,9,10], [8,9,10,11,12,13], 13),
       RM([4,5,6,7,0,8,9,10], [1,2,3], [1,2,3,11,12,13], 13)]

class Gen:
    def __init__(self):
        self.L = []; self.vm = []; self.lg = []
    def e(self, s): self.L.append("    " + s)
    def c(self, s): self.L.append("    ; " + s)
    def label(self, s): self.L.append(s + ":")
    def vm_issue(self, tag): self.vm.append(tag)
    def vm_wait(self, tags):
        last = -1
        for i, t in enumerate(self.vm):
            if t in tags: last = i
        assert last >= 0, tags
        return min(63, len(self.vm) - 1 - last)
    def lg_issue(self, tag): self.lg.append(tag)
    def lg_wait(self, tag):
        last = -1
        for i, t in enumerate(self.lg):
            if t == tag: last = i
        assert last >= 0, tag
        return min(15, len(self.lg) - 1 - last)

def build(opt):
    g = Gen(); e = g.e
    NS, NF, LOOK = opt.nslot, opt.nf, opt.look
    assert FR + 4 * NF <= SWR
    assert NS == 4 and LDS_BYTES == 163840
    fl = {"Q": opt.fl_q, "K": opt.fl_k, "V": opt.fl_v, "O": opt.fl_o}
    fl["O0"] = opt.fl_o if opt.fl_oa is None else opt.fl_oa
    fl["O1"] = opt.fl_o if opt.fl_ob is None else opt.fl_ob
    fl = {k: ((" " + v.replace("+", " ")) if v else "") for k, v in fl.items()}
    c = (192 ** -0.5) * math.log2(math.e)
    CLIT = f"0x{f32bits(c):08x}"
    stamps = []
    def stamp(name):
        if not opt.stamp: return
        if opt.stamp == 3:
            i = len(stamps); stamps.append(name + "_t"); stamps.append(name + "_c")
            e(f"s_memrealtime s[{48+2*i}:{49+2*i}]")
            e(f"s_memtime s[{50+2*i}:{51+2*i}]")
            return
        i = len(stamps); stamps.append(name)
        e(f"{'s_memtime' if opt.stamp == 2 else 's_memrealtime'} s[{48+2*i}:{49+2*i}]")

    tiles = [(0, "K", j) for j in range(4)] + [(0, "V", j) for j in range(4)] + \
            [(1, "K", j) for j in range(4)] + [(1, "V", j) for j in range(4)]
    tid = {t: i for i, t in enumerate(tiles)}
    NT = len(tiles)
    st = dict(issued=0, free=[0, 1, 2, 3], slot={}, done=[], released=set(), synced=-1, qdone=[], cur_item=0)

    e("s_cmp_ge_u32 s2, 256")
    e("s_cbranch_scc1 L_end")
    if opt.stamp:
        e("s_memtime s[44:45]")
        e("s_load_dwordx2 s[40:41], s[0:1], 40")
    stamp("start")
    if opt.padto:
        e("s_memrealtime s[48:49]")
    e("s_load_dwordx4 s[4:7], s[0:1], 0")
    e("s_load_dwordx4 s[8:11], s[0:1], 16")
    e("v_lshrrev_b32 v1, 6, v0")
    e("v_and_b32 v2, 63, v0")
    e(f"v_readfirstlane_b32 s{S_W}, v1")
    e("v_and_b32 v3, 31, v2")
    e("v_lshrrev_b32 v4, 5, v2")
    e("v_lshrrev_b32 v5, 3, v2")
    e("v_lshl_add_u32 v5, v1, 3, v5")
    e("v_bfe_u32 v6, v2, 4, 1")
    e("v_lshlrev_b32 v6, 2, v6")
    e("v_lshl_or_b32 v6, v4, 1, v6")
    e("v_and_b32 v7, 1, v1")
    e("v_or_b32 v6, v6, v7")
    e("v_and_b32 v7, 7, v2")
    e("v_xor_b32 v6, v6, v7")
    e("v_mul_u32_u24 v5, 384, v5")
    e(f"v_lshl_add_u32 v{VD}, v6, 4, v5")
    e(f"s_lshl_b32 s{S_W1024}, s{S_W}, 10")
    if opt.headmap == 0:
        e(f"s_mul_i32 s{S_HEAD[0]}, s2, {HEAD_BYTES}")
        e(f"s_add_u32 s{S_HEAD[1]}, s{S_HEAD[0]}, {256*HEAD_BYTES}")
    else:
        e(f"s_mul_i32 s{S_HEAD[0]}, s2, {2*HEAD_BYTES}")
        e(f"s_add_u32 s{S_HEAD[1]}, s{S_HEAD[0]}, {HEAD_BYTES}")
    if opt.fakemem:
        e(f"s_and_b32 s{S_HEAD[0]}, s2, 7")
        e(f"s_mul_i32 s{S_HEAD[0]}, s{S_HEAD[0]}, {HEAD_BYTES}")
        e(f"s_mov_b32 s{S_HEAD[1]}, s{S_HEAD[0]}")
    if opt.rot:
        if opt.rot == 1:
            e("s_and_b32 s90, s2, 3")
        elif opt.rot == 2:
            e("s_lshr_b32 s90, s2, 3")
            e("s_and_b32 s90, s90, 3")
        elif opt.rot == 3:
            e("s_lshr_b32 s90, s2, 3")
            e("s_add_u32 s90, s90, s2")
            e("s_and_b32 s90, s90, 3")
        for t in range(4):
            e(f"s_add_u32 s{96+t}, s90, {t}")
            e(f"s_and_b32 s{96+t}, s{96+t}, 3")
            e(f"s_mul_i32 s{92+t}, s{96+t}, {TILE_BYTES}")
    e("s_waitcnt lgkmcnt(0)")
    for srd, sp in ((SRD_Q, 4), (SRD_K, 6), (SRD_V, 8), (SRD_O, 10)):
        e(f"s_mov_b32 s{srd}, s{sp}")
        e(f"s_mov_b32 s{srd+1}, s{sp+1}")
        e(f"s_mov_b32 s{srd+2}, {TOTAL_BYTES}")
        e(f"s_mov_b32 s{srd+3}, 0x00020000")

    e(f"s_lshl_b32 s{S_T2}, s{S_W}, 13")
    e(f"s_add_u32 s{S_STG}, s{S_T2}, {STG0}")
    e(f"s_add_u32 s{S_ZB}, s{S_STG}, {ZOFF}")
    e(f"s_mul_i32 s{S_QW}, s{S_W}, {24*384}")
    e(f"s_and_b32 s{S_X0}, s{S_W}, 1")
    e(f"s_lshl_b32 s{S_X0}, s{S_X0}, 4")
    e(f"s_xor_b32 s{S_X1}, s{S_X0}, 16")
    def q_dma(h, c, i, zone):
        e(f"v_xor_b32 v{VT0}, s{S_X0 if i % 2 == 0 else S_X1}, v{VD}")
        e(f"s_add_u32 m0, s{zone}, {i*1024}")
        e(f"s_add_u32 s{S_TOFF}, s{S_HEAD[h]}, s{S_QW}")
        e(f"s_add_u32 s{S_TOFF}, s{S_TOFF}, {i*3072 + c*128}")
        e(f"buffer_load_dwordx4 v{VT0}, s[{SRD_Q}:{SRD_Q+3}], s{S_TOFF} offen{fl['Q']} lds")
        g.vm_issue(("Qd", h, c))
    def q_rd(h, c, zone, r0):
        rm = RMS[h]
        e(f"s_waitcnt vmcnt({g.vm_wait([('Qd', h, c)])})")
        e(f"v_add_u32 v{r0}, s{zone}, v{KB0}")
        for j in range(1, 4):
            e(f"v_xor_b32 v{r0+j}, {32*j}, v{r0}")
        for j in range(4):
            sidx = 4 * c + j
            e(f"ds_read_b128 v[{rm.q(sidx)}:{rm.q(sidx)+3}], v{r0+j}")
            g.lg_issue(("q", h, c))
    pend = []
    pend_t = {}
    def emit_dma():
        n, b = pend.pop(0)
        h, kind, t = tiles[n]
        slot = st["slot"][n]
        srd = {"Q": SRD_Q, "K": SRD_K, "V": SRD_V}[kind]
        e(f"s_add_u32 m0, s{S_W1024}, {slot*TILE_BYTES + b*8064}")
        if opt.rot:
            e(f"s_add_u32 s{S_TOFF}, s{S_HEAD[h]}, s{92+t}")
        else:
            e(f"s_add_u32 s{S_TOFF}, s{S_HEAD[h]}, {t*TILE_BYTES}")
        e(f"buffer_load_dwordx4 v{VD}, s[{srd}:{srd+3}], s{S_TOFF} offen offset:{128*b}{fl[kind]} lds")
        g.vm_issue(("T", n))
    def issue_next(now=True):
        n = st["issued"]
        slot = st["free"].pop(0)
        st["slot"][n] = slot
        st["issued"] += 1
        for b in range(3):
            pend.append((n, b))
            pend_t[(n, b)] = st["cur_item"] + NF - 1
        if now:
            while pend: emit_dma()
    def sync(n):
        assert n == st["synced"] + 1, (n, st["synced"])
        assert n < st["issued"], f"tile {n} not issued before its sync"
        st["synced"] = n
        h, kind, t = tiles[n]
        while any(p[0] <= n for p in pend):
            emit_dma()
        g.c(f"---- sync tile {n} ({kind}{t} head {h})")
        if not opt.nowait:
            e(f"s_waitcnt vmcnt({g.vm_wait([('T', n)])})")
        if not (opt.nobar and st.get("initems")):
            e("s_barrier")
        if opt.stamp and (h, kind, t) in STAMP_AT:
            stamp(f"{kind}{t}{'AB'[h]}")
        if opt.wbl2 and (h, kind, t) == (1, "V", opt.wbl2_at):
            assert opt.wbl2_at == 3
            e(f"s_cmp_lt_u32 s2, {8*opt.wbl2}")
            e("s_cbranch_scc0 L_nowb")
            e(f"s_cmp_eq_u32 s{S_W}, 0")
            e("s_cbranch_scc0 L_nowb")
            e("buffer_wbl2 sc1")
            g.label("L_nowb")
        for d in st["done"]:
            if d not in st["released"]:
                st["released"].add(d)
                if d == "ZC": st["free"] += [2, 3]
                else: st["free"].append(st["slot"][d])
        lk = LOOK
        if opt.looks:
            lk = int(opt.looks[n])
        while st["issued"] < NT and st["free"] and st["issued"] - (n + 1) < lk:
            issue_next(now=(opt.dmagap == 0 or not st.get("initems")))
        if opt.stamp and opt.stampdma and (h, kind, t) in STAMP_AT:
            stamp(f"d{kind}{t}{'AB'[h]}")
    if opt.stamp == 3:
        STAMP_AT = {(0,"K",0),(0,"V",0),(0,"V",2),(1,"K",0),(1,"K",2),(1,"V",0)}
    elif opt.stampdma:
        STAMP_AT = {(0,"K",1),(0,"K",2),(0,"V",1),(0,"V",3),(1,"Q",3),(1,"K",0),(1,"K",1),(1,"K",2),(1,"K",3),(1,"V",0)}
    else:
      STAMP_AT = {(0,"Q",0),(0,"K",0),(0,"K",1),(0,"K",3),(0,"V",0),(0,"V",1),(0,"V",2),(0,"V",3),(1,"K",0),(1,"K",1),(1,"K",3),(1,"V",0),(1,"V",1),(1,"V",3)}

    issue_next()
    for i in range(4): q_dma(0, 0, i, S_STG)
    if opt.codepf:
        e("s_getpc_b64 s[10:11]")
        g.label("L_pc")
        e("s_lshr_b32 s9, s2, 3")
        e("s_lshl_b32 s9, s9, 3")
        e(f"s_add_u32 s9, s9, s{S_W}")
        e("s_lshl_b32 s9, s9, 7")
        e("s_min_u32 s9, s9, L_end-L_pc")
        e("s_load_dword s8, s[10:11], s9")

    e("v_bfe_u32 v5, v3, 1, 1")
    e("v_lshlrev_b32 v5, 2, v5")
    e("v_bfe_u32 v6, v3, 2, 1")
    e("v_lshl_or_b32 v5, v6, 1, v5")
    e("v_bfe_u32 v6, v3, 3, 1")
    e("v_or_b32 v5, v5, v6")
    e("v_xor_b32 v5, v5, v4")
    e("v_lshlrev_b32 v5, 4, v5")
    e(f"v_lshl_add_u32 v{KB0}, v3, 7, v5")
    e("v_bfe_u32 v5, v2, 2, 2")
    e("v_lshl_add_u32 v6, v4, 2, v5")
    e("v_lshlrev_b32 v6, 7, v6")
    e("v_bfe_u32 v7, v2, 4, 1")
    e("v_lshlrev_b32 v7, 1, v7")
    e("v_bfe_u32 v8, v2, 1, 1")
    e("v_or_b32 v7, v7, v8")
    e("v_bfe_u32 v8, v2, 3, 1")
    e("v_lshlrev_b32 v8, 2, v8")
    e("v_lshl_or_b32 v8, v4, 1, v8")
    e("v_xor_b32 v7, v7, v8")
    e("v_lshl_add_u32 v6, v7, 4, v6")
    e("v_and_b32 v7, 1, v2")
    e(f"v_lshl_add_u32 v{VB0}, v7, 3, v6")
    e(f"s_mov_b32 s{S_NC}, 0x{f32bits(-c):08x}")
    e(f"s_mul_i32 s{S_SO}, s{S_W}, {32*384}")
    e(f"s_add_u32 s{S_OB[0]}, s{S_HEAD[0]}, s{S_SO}")
    e(f"s_add_u32 s{S_OB[1]}, s{S_HEAD[1]}, s{S_SO}")
    e("v_and_b32 v5, 7, v3")
    e(f"v_lshlrev_b32 v{SWR}, 7, v3")
    e(f"v_lshl_add_u32 v{SWR}, v5, 4, v{SWR}")
    e(f"v_lshl_add_u32 v{SWR}, v4, 3, v{SWR}")
    e(f"v_add_u32 v{SWR}, s{S_STG}, v{SWR}")
    e(f"v_lshlrev_b32 v{SRR}, 4, v2")
    e(f"v_add_u32 v{SRR}, s{S_STG}, v{SRR}")
    e("v_lshrrev_b32 v5, 3, v2")
    e("v_and_b32 v6, 7, v2")
    e("v_xor_b32 v6, v6, v5")
    e(f"v_mul_u32_u24 v{SOR}, 384, v5")
    e(f"v_lshl_add_u32 v{SOR}, v6, 4, v{SOR}")
    if opt.stamp != 3: stamp("issued")

    def set_ab(n, r0=AB):
        h, kind, t = tiles[n]
        base = st["slot"][n] * TILE_BYTES
        if kind == "V":
            e(f"v_add_u32 v{r0}, {base}, v{VB0}")
            e(f"v_xor_b32 v{r0+1}, 16, v{r0}")
            e(f"v_xor_b32 v{r0+2}, 64, v{r0}")
            e(f"v_xor_b32 v{r0+3}, 0x50, v{r0}")
        else:
            e(f"v_add_u32 v{r0}, {base}, v{KB0}")
            if kind == "Q":
                e(f"v_add_u32 v{r0}, s{S_U}, v{r0}")
            for j in range(1, 4):
                e(f"v_xor_b32 v{r0+j}, {32*j}, v{r0}")

    lblc = [0]
    def q_read(n, r0):
        h, kind, j = tiles[n]
        rm = RMS[h]
        lblc[0] += 1
        lab = f"L_q{lblc[0]}"
        if opt.rot:
            e(f"s_cmp_eq_u32 s{S_WH}, s{96+j}")
        else:
            e(f"s_cmp_eq_u32 s{S_WH}, {j}")
        e(f"s_cbranch_scc0 {lab}")
        set_ab(n, r0)
        for s in range(12):
            e(f"ds_read_b128 v[{rm.q(s)}:{rm.q(s)+3}], v{r0 + (s & 3)} offset:{(s >> 2)*8192}")
        if not st.get("initems"):
            e("s_waitcnt lgkmcnt(0)")
            g.label(lab)
            st["done"].append(n)
        else:
            g.label(lab)
            st["qdone"].append((n, st["cur_item"] + NF + 1))

    def max_tile(rm, T):
        b = rm.S[T]; m = rm.MT + T
        out = [f"v_max3_f32 v{m}, v{b}, v{b+1}, v{b+2}"]
        for k in range(6):
            out.append(f"v_max3_f32 v{m}, v{m}, v{b+3+2*k}, v{b+4+2*k}")
        out.append(f"v_max_f32 v{m}, v{m}, v{b+15}")
        out.append(f"v_mul_f32 v{m}, s{S_NC}, v{m}")
        return out
    def exp_ops(rm, T, nreg):
        b = rm.S[T]
        Fm = lambda i: f"v_fmamk_f32 v{b+i}, v{b+i}, {CLIT}, v{nreg}"
        Ex = lambda i: f"v_exp_f32 v{b+i}, v{b+i}"
        out = [Fm(0), Fm(1)]
        for i in range(16):
            out.append(Ex(i))
            if i + 2 < 16: out.append(Fm(i + 2))
        return out
    def prod_half(rm, H, first=False):
        b = rm.half(H); T = H >> 1
        out = []
        if T <= 5:
            fr = rm.F[T] if T >= 1 else VT0
            for i in range(8):
                out.append(f"v_mul_f32 v{b+i}, v{fr}, v{b+i}")
        adds = []
        for i in range(8):
            if first and i < 2:
                adds.append(f"v_mov_b32 v{VL+i}, v{b+i}")
            else:
                adds.append(f"v_add_f32 v{VL+(i&1)}, v{VL+(i&1)}, v{b+i}")
        cv = [f"v_cvt_pk_bf16_f32 v{b+j}, v{b+2*j}, v{b+2*j+1}" for j in range(4)]
        for j in range(4):
            out += [adds[2*j], adds[2*j+1], cv[j]]
        return out
    def sm_head(rm):
        m = rm.MT
        out = ["s_nop 7", "s_nop 3"]
        out += max_tile(rm, 7)
        out += [f"v_min3_f32 v{NF_}, v{m}, v{m+1}, v{m+2}",
                f"v_min3_f32 v{NF_}, v{NF_}, v{m+3}, v{m+4}",
                f"v_min3_f32 v{NF_}, v{NF_}, v{m+5}, v{m+6}",
                f"v_min_f32 v{NF_}, v{NF_}, v{m+7}",
                f"v_mov_b32 v{VT0}, v{NF_}", "s_nop 1",
                f"v_permlane32_swap_b32 v{NF_}, v{VT0}", "s_nop 1",
                f"v_min_f32 v{NF_}, v{NF_}, v{VT0}",
                f"v_sub_f32 v{VT0}, v{NF_}, v{m}",
                f"v_exp_f32 v{VT0}, v{VT0}",
                f"v_sub_f32 v{m+5}, v{NF_}, v{m+5}"]
        out += prod_half(rm, 0, first=True)
        out += [f"v_exp_f32 v{rm.F[5]}, v{m+5}"]
        for T in range(1, 5):
            out.append(f"v_sub_f32 v{rm.F[T]}, v{NF_}, v{m+T}")
        for T in range(1, 5):
            out.append(f"v_exp_f32 v{rm.F[T]}, v{rm.F[T]}")
        out.append("s_nop 0")
        return out
    def inv_l(rm):
        return [f"v_add_f32 v{VL}, v{VL}, v{VL+1}",
                f"v_mov_b32 v{VT0}, v{VL}", "s_nop 1",
                f"v_permlane32_swap_b32 v{VL}, v{VT0}", "s_nop 1",
                f"v_add_f32 v{VL}, v{VL}, v{VT0}",
                f"v_rcp_f32 v{rm.INV}, v{VL}"]
    def ep_addr(rm):
        SW, SR, SO = rm.SW, rm.SR, rm.SO
        return [f"v_mbcnt_lo_u32_b32 v{VT0}, -1, 0",
                f"v_mbcnt_hi_u32_b32 v{VT0}, -1, v{VT0}",
                f"v_and_b32 v{SR}, 31, v{VT0}",
                f"v_mul_u32_u24 v{SW}, {STG_PITCH}, v{SR}",
                f"v_lshrrev_b32 v{SR}, 5, v{VT0}",
                f"v_lshl_add_u32 v{SW}, v{SR}, 3, v{SW}",
                f"v_add_u32 v{SW}, s{S_STG}, v{SW}",
                f"v_lshrrev_b32 v{SO}, 3, v{VT0}",
                f"v_mul_u32_u24 v{SR}, {STG_PITCH}, v{SO}",
                f"v_and_b32 v{VT0}, 7, v{VT0}",
                f"v_lshl_add_u32 v{SR}, v{VT0}, 4, v{SR}",
                f"v_add_u32 v{SR}, s{S_STG}, v{SR}",
                f"v_mul_u32_u24 v{SO}, 384, v{SO}",
                f"v_lshl_add_u32 v{SO}, v{VT0}, 4, v{SO}"]
    def ep_scale(h, b, dest=None):
        rm = RMS[h]
        ops = []; pairs = []
        for dd in range(2):
            R = rm.O[2*b + dd]
            for gq in range(4):
                B = R + 4 * gq
                D = B if dest is None else dest + 2 * (4*dd + gq)
                for i in range(4):
                    ops.append(("v", f"v_mul_f32 v{B+i}, v{rm.INV}, v{B+i}"))
                ops.append(("v", f"v_cvt_pk_bf16_f32 v{D}, v{B}, v{B+1}"))
                ops.append(("v", f"v_cvt_pk_bf16_f32 v{D+1}, v{B+2}, v{B+3}"))
                pairs.append(D)
        return ops, pairs
    def ep_write(h, b, pairs, off=0):
        out = []
        o = f" offset:{off}" if off else ""
        for k, D in enumerate(pairs):
            if k == 0:
                out.append([("dsw", f"ds_write_b64 v{SWR}, v[{D}:{D+1}]{o}", ("ow", h, b))])
            else:
                out.append([("v", f"v_xor_b32 v{VT0}, {16*k}, v{SWR}"),
                            ("dsw", f"ds_write_b64 v{VT0}, v[{D}:{D+1}]{o}", ("ow", h, b))])
        return out
    def ep_rd(h, b, i, T, off=0):
        return ("dsr", f"ds_read_b128 v[{T}:{T+3}], v{SRR} offset:{off + i*1024}", ("or", h, b, i))
    def ep_st(h, b, i, T):
        return [("wl", ("or", h, b, i)),
                ("s", f"s_add_u32 s{S_ST}, s{S_OB[h]}, {3072*i}"),
                ("st", f"buffer_store_dwordx4 v[{T}:{T+3}], v{SOR}, s[{SRD_O}:{SRD_O+3}], s{S_ST} offen offset:{128*b}{fl['O%d' % h]}", ("O", h))]
    def interleave_writes(ops, pairs, h, b, off=0):
        out = []
        w = ep_write(h, b, pairs, off)
        for k in range(8):
            out += ops[6*k:6*k+6] + w[k]
        return out
    def emit_op(op):
        if isinstance(op, str):
            e(op); return
        k = op[0]
        if k in ("v", "s"): e(op[1])
        elif k in ("dsw", "dsr"): e(op[1]); g.lg_issue(op[2])
        elif k == "wl": e(f"s_waitcnt lgkmcnt({g.lg_wait(op[1])})")
        elif k == "st":
            if opt.skip_o is not None and op[2][1] in opt.skip_o: return
            e(op[1]); g.vm_issue(op[2])
        elif k == "sync": sync(op[1])
        elif k == "qdma": q_dma(op[1], op[2], op[3], op[4])
        elif k == "qrd": q_rd(op[1], op[2], op[3], op[4])
        elif k == "rel": st["done"].append(op[1])
        elif k == "stamp": stamp(op[1])
        else: raise ValueError(op)

    items = []
    def spread(ops, lo, hi):
        n = hi - lo
        assert n > 0
        for k, op in enumerate(ops):
            idx = lo + (k * n) // len(ops)
            if k > 0 and isinstance(op, tuple) and op[0] == "dsw" and f"v{VT0}," in op[1]:
                idx = last_idx
            items[idx]["post"].append(op)
            last_idx = idx

    base = {}
    for h in range(2):
        rm = RMS[h]
        base[(h, "K")] = len(items)
        for t in range(4):
            n = tid[(h, "K", t)]
            korder = [(u, s) for u in range(2) for s in range(12)]
            if h == 0 and t == 0:
                korder = [(u, s) for cb in range(3) for u in range(2) for s in range(4*cb, 4*cb+4)]
            for u, s in korder:
                if True:
                    d = rm.S[2 * t + u]
                    items.append(dict(tile=n,
                        reads=[f"ds_read_b128 v[{{fr}}:{{fr3}}], v{AB + (s & 3)} offset:{(s >> 2)*8192 + u*4096}"],
                        mfma=f"v_mfma_f32_32x32x16_bf16 v[{d}:{d+15}], v[{{fr}}:{{fr3}}], v[{rm.q(s)}:{rm.q(s)+3}], " + ("0" if s == 0 else f"v[{d}:{d+15}]"),
                        pre=[], post=[]))
        base[(h, "V")] = len(items)
        for t in range(4):
            n = tid[(h, "V", t)]
            if t < 3:
                order = [(ks, dt) for ks in range(4) for dt in range(6)]
            elif h == 1 and opt.dtmajor:
                order = [(ks, dt) for b in (2, 1, 0) for dt in (2*b, 2*b+1) for ks in range(4)]
            else:
                order = [(ks, dt) for ks in range(2) for dt in range(6)] + \
                        [(ks, dt) for b in (2, 1, 0) for dt in (2*b, 2*b+1) for ks in (2, 3)]
            for ks, dt in order:
                d = rm.O[dt]
                H = 4 * t + ks
                pk = rm.half(H)
                first = (t == 0 and ks == 0)
                items.append(dict(tile=n,
                    reads=[f"ds_read_b64_tr_b16 v[{{fr}}:{{fr1}}], v{AB + 2*(dt & 1)} offset:{(dt >> 1)*8192 + ks*2048}",
                           f"ds_read_b64_tr_b16 v[{{fr2}}:{{fr3}}], v{AB + 2*(dt & 1) + 1} offset:{(dt >> 1)*8192 + ks*2048 + 1024}"],
                    mfma=f"v_mfma_f32_32x32x16_bf16 v[{d}:{d+15}], v[{{fr}}:{{fr3}}], v[{pk}:{pk+3}], " + ("0" if first else f"v[{d}:{d+15}]"),
                    pre=[], post=[]))
    NI = len(items)
    for h in range(2):
        rm = RMS[h]
        K0 = base[(h, "K")]; V0 = base[(h, "V")]
        comp = [12 * T + 11 for T in range(8)]
        if h == 0:
            comp[0] = 19; comp[1] = 23
        for T in range(7):
            lo = K0 + comp[T] + 5
            spread(max_tile(rm, T), lo, lo + 4)
        for T in range(6):
            lo = K0 + comp[T] + 9
            spread(exp_ops(rm, T, rm.MT + T), lo, lo + 12)
        items[V0]["pre"] += sm_head(rm)
        for H in range(1, 12):
            spread(prod_half(rm, H), V0 + 6*(H-1), V0 + 6*H - 1)
        e6 = exp_ops(rm, 6, NF_); e7 = exp_ops(rm, 7, NF_)
        if h == 1 and opt.dtmajor:
            spread(e6, V0 + 0, V0 + 48)
            spread(e7, V0 + 6, V0 + 56)
        else:
            spread(e6, V0 + 0, V0 + 58)
            spread(e7, V0 + 6, V0 + 64)
    def at(idx, ops):
        items[idx]["post"] += ops
    def spread_groups(groups, lo, hi):
        n = hi - lo
        for k, grp in enumerate(groups):
            items[lo + (k * n) // len(groups)]["post"] += grp
    for h in range(2):
        rm = RMS[h]
        V0 = base[(h, "V")]
        if h == 0 or not opt.dtmajor:
            spread(prod_half(rm, 12), V0 + 66, V0 + 71)
            spread(prod_half(rm, 13), V0 + 72, V0 + 77)
            spread(prod_half(rm, 14), V0 + 72, V0 + 83)
            spread(prod_half(rm, 15), V0 + 73, V0 + 83)
            at(V0 + 84, inv_l(rm))
        else:
            spread(prod_half(rm, 12), V0 + 52, V0 + 62)
            spread(prod_half(rm, 13), V0 + 56, V0 + 66)
            spread(prod_half(rm, 14), V0 + 60, V0 + 70)
            spread(prod_half(rm, 15), V0 + 62, V0 + 71)
            at(V0 + 72, inv_l(rm))
    rmA, rmB = RMS
    V0 = base[(0, "V")]; K1 = base[(1, "K")]; V1 = base[(1, "V")]
    T0, T1 = 216, 220
    ops2, p2 = ep_scale(0, 2)
    spread(interleave_writes(ops2, p2, 0, 2), V0 + 91, K1 + 8)
    ops1, p1 = ep_scale(0, 1)
    spread(interleave_writes(ops1, p1, 0, 1, ZOFF), K1 + 8, K1 + 19)
    def rdst(h, b, i, T, ir, ist, off=0):
        at(ir, [ep_rd(h, b, i, T, off)])
        at(ist, ep_st(h, b, i, T))
    H2 = rmB.half(2) + 4; H3 = rmB.half(3) + 4; H4 = rmB.half(4) + 4; H5 = rmB.half(5) + 4
    sched = [int(x) for x in opt.osched.split(",")]
    ready = {H2: V1 + 11, H3: V1 + 17, H4: V1 + 23, H5: V1 + 29}
    busy = {T0: -1, T1: -1, H2: -1, H3: -1, H4: -1, H5: -1}
    tmap = {}
    for it0 in sorted(sched):
        it = K1 + it0
        cands = [T0, T1] if it0 < 98 else [t for t in (H2, H3, H4, H5) if it - 5 > ready[t]]
        cands = [t for t in cands if busy[t] + 2 < it - 5]
        assert cands, it0
        tmap[it0] = cands[0]; busy[cands[0]] = it
    assert len(set(sched)) == 12
    def temp_for(it, k): return tmap[it - K1]
    def min_ok(it, T): pass
    for k in range(4):
        it = K1 + sched[k]; T = temp_for(it, k); min_ok(it, T)
        rdst(0, 2, k, T, it - 5, it, 0)
    b0_lo = K1 + max(sched[3] - 4, 19)
    ops0, p0 = ep_scale(0, 0)
    spread(ops0, K1 + 19, K1 + 31)
    b0_lo = max(b0_lo, K1 + 31)
    spread_groups(ep_write(0, 0, p0), b0_lo, b0_lo + 8)
    assert b0_lo + 8 <= K1 + 58
    for k in range(4):
        it = K1 + sched[4 + k]; T = temp_for(it, k); min_ok(it, T)
        rdst(0, 1, k, T, it - 5, it, ZOFF)
    for k in range(4):
        it = K1 + sched[8 + k]; T = temp_for(it, k); min_ok(it, T)
        assert it - 5 >= b0_lo + 8
        rdst(0, 0, k, T, it - 5, it, 0)
    assert K1 + sched[11] < V1 + 80
    K0 = base[(0, "K")]
    for i in range(4): at(K0 + 1 + i, [("qdma", 0, 2, i, S_STG)])
    at(K0 + 5, [("qrd", 0, 1, S_ZB, 176)])
    items[K0 + 8]["pre"] += [("wl", ("q", 0, 1))]
    at(K0 + 13, [("qrd", 0, 2, S_STG, 176)])
    items[K0 + 16]["pre"] += [("wl", ("q", 0, 2))]
    for i in range(4): at(K0 + opt.qb0_at + opt.qb_sp*i, [("qdma", 1, 0, i, S_STG)])
    for i in range(4): at(K0 + opt.qb1_at + opt.qb_sp*i, [("qdma", 1, 1, i, S_ZB)])
    at(V0 + 24, [("qrd", 1, 0, S_STG, rmA.QA)])
    at(V0 + 29, [("wl", ("q", 1, 0))])
    for i in range(4): at(V0 + 29 + opt.qc2_sp * i, [("qdma", 1, 2, i, S_STG)])
    at(V0 + 36, [("qrd", 1, 1, S_ZB, rmA.QA)])
    at(V0 + opt.qc2_at, [("qrd", 1, 2, S_STG, rmA.QA)])
    items[K1 + 0]["pre"] += [("wl", ("q", 1, 0)), ("wl", ("q", 1, 1))]
    items[K1 + 8]["pre"] += [("wl", ("q", 1, 2))]
    if opt.stamp != 3:
        at(V0 + 95, [("stamp", "endA")])
    TB = [rmB.S[1] + 4*k for k in range(4)] + [rmB.S[2] + 4*k for k in range(4)] + [rmB.S[3] + 4*k for k in range(4)]
    tail = []
    if opt.dtmajor:
        c2 = V1 + 79; c1 = V1 + 87
    else:
        c2 = V1 + 87; c1 = V1 + 91
    o2, q2 = ep_scale(1, 2); o1, q1 = ep_scale(1, 1); o0, q0 = ep_scale(1, 0)
    A2 = interleave_writes(o2, q2, 1, 2)
    R2 = [ep_rd(1, 2, i, TB[i]) for i in range(4)]
    S2 = sum([ep_st(1, 2, i, TB[i]) for i in range(4)], [])
    A1 = interleave_writes(o1, q1, 1, 1, ZOFF)
    R1 = [ep_rd(1, 1, i, TB[4+i], ZOFF) for i in range(4)]
    S1 = sum([ep_st(1, 1, i, TB[4+i]) for i in range(4)], [])
    A0 = interleave_writes(o0, q0, 1, 0)
    R0 = [ep_rd(1, 0, i, TB[8+i]) for i in range(4)]
    S0 = sum([ep_st(1, 0, i, TB[8+i]) for i in range(4)], [])
    assert opt.dtmajor
    spread(A2, c2 + 4, c2 + 12)
    at(c2 + 12, R2)
    k1 = 28
    spread(A1[:27], c1 + 4, V1 + 96)
    tail = A1[27:] + S2[:6] + R1 + A0[:27] + S2[6:] + A0[27:] + S1 + R0 + S0
    def fmt(s, i):
        fr = FR + 4 * (i % NF)
        return s.format(fr=fr, fr1=fr + 1, fr2=fr + 2, fr3=fr + 3)
    def issue_reads(j):
        it = items[j]
        if j == 0 or items[j - 1]["tile"] != it["tile"]:
            sync(it["tile"])
            set_ab(it["tile"])
        for r in it["reads"]:
            if opt.memonly == 2:
                g.lg_issue(("f", j)); g.lg.pop(); g.lg.append(("f", j)); continue
            e(fmt(r, j)); g.lg_issue(("f", j))
    st["initems"] = True
    sync(0)
    for i in range(4): q_dma(0, 1, i, S_ZB)
    q_rd(0, 0, S_STG, 176)
    set_ab(0)
    first_done = True
    for j in range(NF - 1):
        for r in items[j]["reads"]:
            e(fmt(r, j)); g.lg_issue(("f", j))
    items[0]["pre"] = [("wl", ("q", 0, 0))] + items[0]["pre"]
    def dma_delay(n):
        if n <= 1: return 0
        if opt.delays: return int(opt.delays[n], 36)
        return opt.dmadelay
    st["initems"] = True
    last_dma = opt.k1_at - opt.dmagap
    for i, it in enumerate(items):
        if opt.prio and i % 6 == 0:
            ph = (i + NF - 1) % 24
            if ph < 6:
                pass
        if opt.prio:
            ph = (i + NF - 1) % 24
            if ph % 6 == 0:
                e(f"s_setprio {3 - ph // 6}")
        st["cur_item"] = i
        for (qn, qi) in list(st["qdone"]):
            if i >= qi:
                st["done"].append(qn); st["qdone"].remove((qn, qi))
        if not opt.memonly:
            for op in it["pre"]: emit_op(op)
        e(f"s_waitcnt lgkmcnt({g.lg_wait(('f', i))})")
        if not opt.memonly:
            e(fmt(it["mfma"], i))
        if i + 1 == NI or items[i + 1]["tile"] != it["tile"]:
            st["done"].append(it["tile"])
        j = i + NF - 1
        if j < NI: issue_reads(j)
        if pend and i - last_dma >= opt.dmagap and (i + NF - 1) >= pend_t[pend[0]] + dma_delay(pend[0][0]):
            emit_dma(); last_dma = i
        for op in it["post"]:
            if opt.memonly and (isinstance(op, str) or op[0] == "v"):
                if isinstance(op, str) and ("mbcnt" in op or "u32" in op or "v_and" in op or "v_lshr" in op):
                    emit_op(op)
                continue
            emit_op(op)
    assert not pend
    stamp("mfma_done")
    for op in tail:
        if opt.memonly and op[0] == "v": continue
        emit_op(op)
    if opt.stamp != 3: stamp("ep_done")
    if opt.padto:
        e("s_waitcnt vmcnt(0)")
        g.label("L_spin")
        e("s_sleep 2")
        e("s_memrealtime s[50:51]")
        e("s_waitcnt lgkmcnt(0)")
        e("s_sub_u32 s52, s50, s48")
        e(f"s_cmp_lt_u32 s52, {opt.padto}")
        e("s_cbranch_scc1 L_spin")
    if opt.stamp:
        e("s_waitcnt vmcnt(0)")
        stamp("end")
        e("s_memtime s[46:47]")
        e("s_waitcnt lgkmcnt(0)")
        e("s_mov_b32 s42, 0x10000000")
        e("s_mov_b32 s43, 0x00020000")
        e("s_lshl_b32 s33, s2, 3")
        e(f"s_add_u32 s33, s33, s{S_W}")
        e("s_lshl_b32 s33, s33, 8")
        e("v_mov_b32 v1, 0")
        for i in range(len(stamps)):
            e(f"v_mov_b32 v0, s{48+2*i}")
            e(f"buffer_store_dword v0, v1, s[40:43], s33 offen offset:{4*i}")
        e("s_sub_u32 s46, s46, s44")
        e("v_mov_b32 v0, s46")
        e(f"buffer_store_dword v0, v1, s[40:43], s33 offen offset:{4*len(stamps)}")
        print("nstamps", len(stamps), "stamps:", " ".join(stamps), file=sys.stderr)
        assert 48 + 2 * len(stamps) <= 102
    g.label("L_end")
    e("s_endpgm")

    out = HEADER
    out += f"; @launch grid=(256,1,1) block=(512,1,1) lds={LDS_BYTES}\n"
    out += '.amdgcn_target "amdgcn-amd-amdhsa--gfx950"\n.text\n'
    out += f".globl {NAME}\n.p2align 8\n.type {NAME},@function\n{NAME}:\n"
    out += "\n".join(g.L) + "\n"
    out += f""".section .rodata,"a"
.p2align 6
.amdhsa_kernel {NAME}
  .amdhsa_next_free_vgpr 256
  .amdhsa_next_free_sgpr {102 if (opt.stamp or opt.padto or opt.rot) else 48}
  .amdhsa_accum_offset 256
  .amdhsa_group_segment_fixed_size 0
  .amdhsa_kernarg_size 48
  .amdhsa_user_sgpr_count 2
  .amdhsa_user_sgpr_kernarg_segment_ptr 1
  .amdhsa_system_sgpr_workgroup_id_x 1
.end_amdhsa_kernel
"""
    return out

if __name__ == "__main__":
    ap = argparse.ArgumentParser()
    ap.add_argument("-o", default="standalone__mha_softmax__near_ridge.s")
    ap.add_argument("--nslot", type=int, default=4)
    ap.add_argument("--nf", type=int, default=4)
    ap.add_argument("--look", type=int, default=2)
    ap.add_argument("--pro", type=int, default=3)
    ap.add_argument("--fl_q", default="")
    ap.add_argument("--fl_k", default="")
    ap.add_argument("--fl_v", default="")
    ap.add_argument("--fl_o", default="")
    ap.add_argument("--headmap", type=int, default=0)
    ap.add_argument("--stamp", type=int, default=0)
    ap.add_argument("--dmagap", type=int, default=3)
    ap.add_argument("--prio", type=int, default=0)
    ap.add_argument("--memonly", type=int, default=0)
    ap.add_argument("--fl_oa", default=None)
    ap.add_argument("--fl_ob", default=None)
    ap.add_argument("--wbl2", type=int, default=0)
    ap.add_argument("--wbl2_at", type=int, default=3)
    ap.add_argument("--fakemem", type=int, default=0)
    ap.add_argument("--badstg", type=int, default=0)
    ap.add_argument("--nowait", type=int, default=0)
    ap.add_argument("--stampdma", type=int, default=0)
    ap.add_argument("--rot", type=int, default=0)
    ap.add_argument("--skip_o", type=lambda x: [int(c) for c in x], default=None)
    ap.add_argument("--nobar", type=int, default=0)
    ap.add_argument("--dtmajor", type=int, default=1)
    ap.add_argument("--korder", default="u")
    ap.add_argument("--qc2_at", type=int, default=84)
    ap.add_argument("--k1_at", type=int, default=6)
    ap.add_argument("--qb0_at", type=int, default=50)
    ap.add_argument("--qb1_at", type=int, default=74)
    ap.add_argument("--qb_sp", type=int, default=4)
    ap.add_argument("--looks", default="")
    ap.add_argument("--dmadelay", type=int, default=0)
    ap.add_argument("--delays", default="")
    ap.add_argument("--osched", default="14,22,30,38,50,62,74,86,114,126,138,150")
    ap.add_argument("--codepf", type=int, default=0)
    ap.add_argument("--qc2_sp", type=int, default=1)
    ap.add_argument("--padto", type=int, default=0)
    opt = ap.parse_args()
    open(opt.o, "w").write(build(opt))
```

```python
import sys, math, struct, argparse

HEADER = """; Kernarg layout for this problem (48 bytes, ptrs only, base s[0:1]):
;   offset   0: d_in[0] q  shape=(16, 32, 256, 192) dtype=bfloat16 strides=(3145728, 98304, 384, 2) contiguous=True
;   offset   8: d_in[1] k  shape=(16, 32, 256, 192) dtype=bfloat16 strides=(3145728, 98304, 384, 2) contiguous=True
;   offset  16: d_in[2] v  shape=(16, 32, 256, 192) dtype=bfloat16 strides=(3145728, 98304, 384, 2) contiguous=True
"""
NAME = "standalone__mha_softmax__near_ridge_kernel"
HEAD_BYTES = 256 * 384
TILE_BYTES = 64 * 384
TOTAL_BYTES = 512 * HEAD_BYTES
STG_PITCH = 128
STG_WAVE = 32 * STG_PITCH
STG0 = 4 * TILE_BYTES
LDS_BYTES = STG0 + 8 * 2 * STG_WAVE
ZOFF = STG_WAVE
S_ZB = 4
S_QW = 5
S_X0, S_X1 = 6, 7
S_ZC = 8
S_T2 = 9

def f32bits(x):
    return struct.unpack("<I", struct.pack("<f", x))[0]

FR = 224
SWR, SRR, SOR, INVR = 240, 241, 242, 243
VD = 244
AB = 245
KB0 = 249
NF_ = 250
VB0 = 251
VL = 252
VT0, VT1 = 254, 255
SRD_Q, SRD_K, SRD_V, SRD_O = 12, 16, 20, 24
S_W1024 = 28
S_HEAD = [29, 30]
S_TOFF = 31
S_NC = 32
S_WH = 34
S_U = 35
S_STG = 36
S_SO = 37
S_ST = 38
S_OB = [39, 33]
S_W = 3

class RM:
    def __init__(self, S, Q, O, MT):
        self.S = [16 * b for b in S]
        self.Q = [16 * b for b in Q]
        self.O = [16 * b for b in O]
        self.MT = 16 * MT
        s0 = self.S[0]
        self.F = {1: s0 + 4, 2: s0 + 5, 3: s0 + 6, 4: s0 + 7, 5: VT1}
        self.QA = s0
        self.SW, self.SR, self.SO, self.INV = SWR, SRR, SOR, INVR
    def q(self, s):
        return self.Q[s // 4] + 4 * (s % 4)
    def half(self, H):
        return self.S[H >> 1] + 8 * (H & 1)
RMS = [RM([0,1,2,3,4,5,6,7], [8,9,10], [8,9,10,11,12,13], 13),
       RM([4,5,6,7,0,8,9,10], [1,2,3], [1,2,3,11,12,13], 13)]

class Gen:
    def __init__(self):
        self.L = []; self.vm = []; self.lg = []
    def e(self, s): self.L.append("    " + s)
    def c(self, s): self.L.append("    ; " + s)
    def label(self, s): self.L.append(s + ":")
    def vm_issue(self, tag): self.vm.append(tag)
    def vm_wait(self, tags):
        last = -1
        for i, t in enumerate(self.vm):
            if t in tags: last = i
        assert last >= 0, tags
        return min(63, len(self.vm) - 1 - last)
    def lg_issue(self, tag): self.lg.append(tag)
    def lg_wait(self, tag):
        last = -1
        for i, t in enumerate(self.lg):
            if t == tag: last = i
        assert last >= 0, tag
        return min(15, len(self.lg) - 1 - last)

def build(opt):
    g = Gen(); e = g.e
    NS, NF, LOOK = opt.nslot, opt.nf, opt.look
    assert FR + 4 * NF <= SWR
    assert NS == 4 and LDS_BYTES == 163840
    fl = {"Q": opt.fl_q, "K": opt.fl_k, "V": opt.fl_v, "O": opt.fl_o}
    fl["O0"] = opt.fl_o if opt.fl_oa is None else opt.fl_oa
    fl["O1"] = opt.fl_o if opt.fl_ob is None else opt.fl_ob
    fl = {k: ((" " + v.replace("+", " ")) if v else "") for k, v in fl.items()}
    c = (192 ** -0.5) * math.log2(math.e)
    CLIT = f"0x{f32bits(c):08x}"
    stamps = []
    def stamp(name):
        if not opt.stamp: return
        if opt.stamp == 3:
            i = len(stamps); stamps.append(name + "_t"); stamps.append(name + "_c")
            e(f"s_memrealtime s[{48+2*i}:{49+2*i}]")
            e(f"s_memtime s[{50+2*i}:{51+2*i}]")
            return
        i = len(stamps); stamps.append(name)
        e(f"{'s_memtime' if opt.stamp == 2 else 's_memrealtime'} s[{48+2*i}:{49+2*i}]")

    tiles = [(0, "K", j) for j in range(4)] + [(0, "V", j) for j in range(4)] + \
            [(1, "K", j) for j in range(4)] + [(1, "V", j) for j in range(4)]
    tid = {t: i for i, t in enumerate(tiles)}
    NT = len(tiles)
    st = dict(issued=0, free=[0, 1, 2, 3], slot={}, done=[], released=set(), synced=-1, qdone=[], cur_item=0)

    e("s_cmp_ge_u32 s2, 256")
    e("s_cbranch_scc1 L_end")
    if opt.stamp:
        e("s_memtime s[44:45]")
        e("s_load_dwordx2 s[40:41], s[0:1], 40")
    stamp("start")
    if opt.padto:
        e("s_memrealtime s[48:49]")
    e("s_load_dwordx4 s[4:7], s[0:1], 0")
    e("s_load_dwordx4 s[8:11], s[0:1], 16")
    e("v_lshrrev_b32 v1, 6, v0")
    e("v_and_b32 v2, 63, v0")
    e(f"v_readfirstlane_b32 s{S_W}, v1")
    e("v_and_b32 v3, 31, v2")
    e("v_lshrrev_b32 v4, 5, v2")
    e("v_lshrrev_b32 v5, 3, v2")
    e("v_lshl_add_u32 v5, v1, 3, v5")
    e("v_bfe_u32 v6, v2, 4, 1")
    e("v_lshlrev_b32 v6, 2, v6")
    e("v_lshl_or_b32 v6, v4, 1, v6")
    e("v_and_b32 v7, 1, v1")
    e("v_or_b32 v6, v6, v7")
    e("v_and_b32 v7, 7, v2")
    e("v_xor_b32 v6, v6, v7")
    e("v_mul_u32_u24 v5, 384, v5")
    e(f"v_lshl_add_u32 v{VD}, v6, 4, v5")
    e(f"s_lshl_b32 s{S_W1024}, s{S_W}, 10")
    if opt.headmap == 0:
        e(f"s_mul_i32 s{S_HEAD[0]}, s2, {HEAD_BYTES}")
        e(f"s_add_u32 s{S_HEAD[1]}, s{S_HEAD[0]}, {256*HEAD_BYTES}")
    else:
        e(f"s_mul_i32 s{S_HEAD[0]}, s2, {2*HEAD_BYTES}")
        e(f"s_add_u32 s{S_HEAD[1]}, s{S_HEAD[0]}, {HEAD_BYTES}")
    if opt.fakemem:
        e(f"s_and_b32 s{S_HEAD[0]}, s2, 7")
        e(f"s_mul_i32 s{S_HEAD[0]}, s{S_HEAD[0]}, {HEAD_BYTES}")
        e(f"s_mov_b32 s{S_HEAD[1]}, s{S_HEAD[0]}")
    if opt.rot:
        if opt.rot == 1:
            e("s_and_b32 s90, s2, 3")
        elif opt.rot == 2:
            e("s_lshr_b32 s90, s2, 3")
            e("s_and_b32 s90, s90, 3")
        elif opt.rot == 3:
            e("s_lshr_b32 s90, s2, 3")
            e("s_add_u32 s90, s90, s2")
            e("s_and_b32 s90, s90, 3")
        for t in range(4):
            e(f"s_add_u32 s{96+t}, s90, {t}")
            e(f"s_and_b32 s{96+t}, s{96+t}, 3")
            e(f"s_mul_i32 s{92+t}, s{96+t}, {TILE_BYTES}")
    e("s_waitcnt lgkmcnt(0)")
    for srd, sp in ((SRD_Q, 4), (SRD_K, 6), (SRD_V, 8), (SRD_O, 10)):
        e(f"s_mov_b32 s{srd}, s{sp}")
        e(f"s_mov_b32 s{srd+1}, s{sp+1}")
        e(f"s_mov_b32 s{srd+2}, {TOTAL_BYTES}")
        e(f"s_mov_b32 s{srd+3}, 0x00020000")

    e(f"s_lshl_b32 s{S_T2}, s{S_W}, 13")
    e(f"s_add_u32 s{S_STG}, s{S_T2}, {STG0}")
    e(f"s_add_u32 s{S_ZB}, s{S_STG}, {ZOFF}")
    e(f"s_mul_i32 s{S_QW}, s{S_W}, {24*384}")
    e(f"s_and_b32 s{S_X0}, s{S_W}, 1")
    e(f"s_lshl_b32 s{S_X0}, s{S_X0}, 4")
    e(f"s_xor_b32 s{S_X1}, s{S_X0}, 16")
    def q_dma(h, c, i, zone):
        e(f"v_xor_b32 v{VT0}, s{S_X0 if i % 2 == 0 else S_X1}, v{VD}")
        e(f"s_add_u32 m0, s{zone}, {i*1024}")
        e(f"s_add_u32 s{S_TOFF}, s{S_HEAD[h]}, s{S_QW}")
        e(f"s_add_u32 s{S_TOFF}, s{S_TOFF}, {i*3072 + c*128}")
        e(f"buffer_load_dwordx4 v{VT0}, s[{SRD_Q}:{SRD_Q+3}], s{S_TOFF} offen{fl['Q']} lds")
        g.vm_issue(("Qd", h, c))
    def q_rd(h, c, zone, r0):
        rm = RMS[h]
        e(f"s_waitcnt vmcnt({g.vm_wait([('Qd', h, c)])})")
        e(f"v_add_u32 v{r0}, s{zone}, v{KB0}")
        for j in range(1, 4):
            e(f"v_xor_b32 v{r0+j}, {32*j}, v{r0}")
        for j in range(4):
            sidx = 4 * c + j
            e(f"ds_read_b128 v[{rm.q(sidx)}:{rm.q(sidx)+3}], v{r0+j}")
            g.lg_issue(("q", h, c))
    pend = []
    pend_t = {}
    def emit_dma():
        n, b = pend.pop(0)
        h, kind, t = tiles[n]
        slot = st["slot"][n]
        srd = {"Q": SRD_Q, "K": SRD_K, "V": SRD_V}[kind]
        e(f"s_add_u32 m0, s{S_W1024}, {slot*TILE_BYTES + b*8064}")
        if opt.rot:
            e(f"s_add_u32 s{S_TOFF}, s{S_HEAD[h]}, s{92+t}")
        else:
            e(f"s_add_u32 s{S_TOFF}, s{S_HEAD[h]}, {t*TILE_BYTES}")
        e(f"buffer_load_dwordx4 v{VD}, s[{srd}:{srd+3}], s{S_TOFF} offen offset:{128*b}{fl[kind]} lds")
        g.vm_issue(("T", n))
    def issue_next(now=True):
        n = st["issued"]
        slot = st["free"].pop(0)
        st["slot"][n] = slot
        st["issued"] += 1
        for b in range(3):
            pend.append((n, b))
            pend_t[(n, b)] = st["cur_item"] + NF - 1
        if now:
            while pend: emit_dma()
    def sync(n):
        assert n == st["synced"] + 1, (n, st["synced"])
        assert n < st["issued"], f"tile {n} not issued before its sync"
        st["synced"] = n
        h, kind, t = tiles[n]
        while any(p[0] <= n for p in pend):
            emit_dma()
        g.c(f"---- sync tile {n} ({kind}{t} head {h})")
        if not opt.nowait:
            e(f"s_waitcnt vmcnt({g.vm_wait([('T', n)])})")
        if opt.prebar and n >= opt.prebar_from:
            lk0 = int(opt.looks[n]) if opt.looks else LOOK
            while st["issued"] < NT and st["free"] and st["issued"] - (n + 1) < lk0:
                issue_next(now=True)
        if not (opt.nobar and st.get("initems")):
            e("s_barrier")
        if opt.stamp and (h, kind, t) in STAMP_AT:
            stamp(f"{kind}{t}{'AB'[h]}")
        if opt.wbl2 and (h, kind, t) == (1, "V", opt.wbl2_at):
            assert opt.wbl2_at == 3
            e(f"s_cmp_lt_u32 s2, {8*opt.wbl2}")
            e("s_cbranch_scc0 L_nowb")
            e(f"s_cmp_eq_u32 s{S_W}, 0")
            e("s_cbranch_scc0 L_nowb")
            e("buffer_wbl2 sc1")
            g.label("L_nowb")
        for d in st["done"]:
            if d not in st["released"]:
                st["released"].add(d)
                if d == "ZC": st["free"] += [2, 3]
                else: st["free"].append(st["slot"][d])
        lk = LOOK
        if opt.looks:
            lk = int(opt.looks[n])
        while st["issued"] < NT and st["free"] and st["issued"] - (n + 1) < lk:
            issue_next(now=(opt.dmagap == 0 or not st.get("initems")))
        if opt.stamp and opt.stampdma and (h, kind, t) in STAMP_AT:
            stamp(f"d{kind}{t}{'AB'[h]}")
    if opt.stamp == 3:
        STAMP_AT = {(0,"K",0),(0,"V",0),(0,"V",2),(1,"K",0),(1,"K",2),(1,"V",0)}
    elif opt.stampdma:
        STAMP_AT = {(0,"K",1),(0,"K",2),(0,"V",1),(0,"V",3),(1,"Q",3),(1,"K",0),(1,"K",1),(1,"K",2),(1,"K",3),(1,"V",0)}
    else:
      STAMP_AT = {(0,"Q",0),(0,"K",0),(0,"K",1),(0,"K",3),(0,"V",0),(0,"V",1),(0,"V",2),(0,"V",3),(1,"K",0),(1,"K",1),(1,"K",3),(1,"V",0),(1,"V",1),(1,"V",3)}

    issue_next()
    for i in range(4): q_dma(0, 0, i, S_STG)
    if opt.codepf:
        e("s_getpc_b64 s[10:11]")
        g.label("L_pc")
        e("s_lshr_b32 s9, s2, 3")
        e("s_lshl_b32 s9, s9, 3")
        e(f"s_add_u32 s9, s9, s{S_W}")
        e("s_lshl_b32 s9, s9, 7")
        e("s_min_u32 s9, s9, L_end-L_pc")
        e("s_load_dword s8, s[10:11], s9")

    e("v_bfe_u32 v5, v3, 1, 1")
    e("v_lshlrev_b32 v5, 2, v5")
    e("v_bfe_u32 v6, v3, 2, 1")
    e("v_lshl_or_b32 v5, v6, 1, v5")
    e("v_bfe_u32 v6, v3, 3, 1")
    e("v_or_b32 v5, v5, v6")
    e("v_xor_b32 v5, v5, v4")
    e("v_lshlrev_b32 v5, 4, v5")
    e(f"v_lshl_add_u32 v{KB0}, v3, 7, v5")
    e("v_bfe_u32 v5, v2, 2, 2")
    e("v_lshl_add_u32 v6, v4, 2, v5")
    e("v_lshlrev_b32 v6, 7, v6")
    e("v_bfe_u32 v7, v2, 4, 1")
    e("v_lshlrev_b32 v7, 1, v7")
    e("v_bfe_u32 v8, v2, 1, 1")
    e("v_or_b32 v7, v7, v8")
    e("v_bfe_u32 v8, v2, 3, 1")
    e("v_lshlrev_b32 v8, 2, v8")
    e("v_lshl_or_b32 v8, v4, 1, v8")
    e("v_xor_b32 v7, v7, v8")
    e("v_lshl_add_u32 v6, v7, 4, v6")
    e("v_and_b32 v7, 1, v2")
    e(f"v_lshl_add_u32 v{VB0}, v7, 3, v6")
    e(f"s_mov_b32 s{S_NC}, 0x{f32bits(-c):08x}")
    e(f"s_mul_i32 s{S_SO}, s{S_W}, {32*384}")
    e(f"s_add_u32 s{S_OB[0]}, s{S_HEAD[0]}, s{S_SO}")
    e(f"s_add_u32 s{S_OB[1]}, s{S_HEAD[1]}, s{S_SO}")
    e("v_and_b32 v5, 7, v3")
    e(f"v_lshlrev_b32 v{SWR}, 7, v3")
    e(f"v_lshl_add_u32 v{SWR}, v5, 4, v{SWR}")
    e(f"v_lshl_add_u32 v{SWR}, v4, 3, v{SWR}")
    e(f"v_add_u32 v{SWR}, s{S_STG}, v{SWR}")
    e(f"v_lshlrev_b32 v{SRR}, 4, v2")
    e(f"v_add_u32 v{SRR}, s{S_STG}, v{SRR}")
    e("v_lshrrev_b32 v5, 3, v2")
    e("v_and_b32 v6, 7, v2")
    e("v_xor_b32 v6, v6, v5")
    e(f"v_mul_u32_u24 v{SOR}, 384, v5")
    e(f"v_lshl_add_u32 v{SOR}, v6, 4, v{SOR}")
    if opt.stamp != 3: stamp("issued")

    def set_ab(n, r0=AB):
        h, kind, t = tiles[n]
        base = st["slot"][n] * TILE_BYTES
        if kind == "V":
            e(f"v_add_u32 v{r0}, {base}, v{VB0}")
            e(f"v_xor_b32 v{r0+1}, 16, v{r0}")
            e(f"v_xor_b32 v{r0+2}, 64, v{r0}")
            e(f"v_xor_b32 v{r0+3}, 0x50, v{r0}")
        else:
            e(f"v_add_u32 v{r0}, {base}, v{KB0}")
            if kind == "Q":
                e(f"v_add_u32 v{r0}, s{S_U}, v{r0}")
            for j in range(1, 4):
                e(f"v_xor_b32 v{r0+j}, {32*j}, v{r0}")

    lblc = [0]
    def q_read(n, r0):
        h, kind, j = tiles[n]
        rm = RMS[h]
        lblc[0] += 1
        lab = f"L_q{lblc[0]}"
        if opt.rot:
            e(f"s_cmp_eq_u32 s{S_WH}, s{96+j}")
        else:
            e(f"s_cmp_eq_u32 s{S_WH}, {j}")
        e(f"s_cbranch_scc0 {lab}")
        set_ab(n, r0)
        for s in range(12):
            e(f"ds_read_b128 v[{rm.q(s)}:{rm.q(s)+3}], v{r0 + (s & 3)} offset:{(s >> 2)*8192}")
        if not st.get("initems"):
            e("s_waitcnt lgkmcnt(0)")
            g.label(lab)
            st["done"].append(n)
        else:
            g.label(lab)
            st["qdone"].append((n, st["cur_item"] + NF + 1))

    def max_tile(rm, T):
        b = rm.S[T]; m = rm.MT + T
        out = [f"v_max3_f32 v{m}, v{b}, v{b+1}, v{b+2}"]
        for k in range(6):
            out.append(f"v_max3_f32 v{m}, v{m}, v{b+3+2*k}, v{b+4+2*k}")
        out.append(f"v_max_f32 v{m}, v{m}, v{b+15}")
        out.append(f"v_mul_f32 v{m}, s{S_NC}, v{m}")
        return out
    def exp_ops(rm, T, nreg):
        b = rm.S[T]
        Fm = lambda i: f"v_fmamk_f32 v{b+i}, v{b+i}, {CLIT}, v{nreg}"
        Ex = lambda i: f"v_exp_f32 v{b+i}, v{b+i}"
        out = [Fm(0), Fm(1)]
        for i in range(16):
            out.append(Ex(i))
            if i + 2 < 16: out.append(Fm(i + 2))
        return out
    def prod_half(rm, H, first=False):
        b = rm.half(H); T = H >> 1
        out = []
        if T <= 5:
            fr = rm.F[T] if T >= 1 else VT0
            for i in range(8):
                out.append(f"v_mul_f32 v{b+i}, v{fr}, v{b+i}")
        adds = []
        for i in range(8):
            if first and i < 2:
                adds.append(f"v_mov_b32 v{VL+i}, v{b+i}")
            else:
                adds.append(f"v_add_f32 v{VL+(i&1)}, v{VL+(i&1)}, v{b+i}")
        cv = [f"v_cvt_pk_bf16_f32 v{b+j}, v{b+2*j}, v{b+2*j+1}" for j in range(4)]
        for j in range(4):
            out += [adds[2*j], adds[2*j+1], cv[j]]
        return out
    def sm_head(rm):
        m = rm.MT
        out = ["s_nop 7", "s_nop 3"]
        out += max_tile(rm, 7)
        out += [f"v_min3_f32 v{NF_}, v{m}, v{m+1}, v{m+2}",
                f"v_min3_f32 v{NF_}, v{NF_}, v{m+3}, v{m+4}",
                f"v_min3_f32 v{NF_}, v{NF_}, v{m+5}, v{m+6}",
                f"v_min_f32 v{NF_}, v{NF_}, v{m+7}",
                f"v_mov_b32 v{VT0}, v{NF_}", "s_nop 1",
                f"v_permlane32_swap_b32 v{NF_}, v{VT0}", "s_nop 1",
                f"v_min_f32 v{NF_}, v{NF_}, v{VT0}",
                f"v_sub_f32 v{VT0}, v{NF_}, v{m}",
                f"v_exp_f32 v{VT0}, v{VT0}",
                f"v_sub_f32 v{m+5}, v{NF_}, v{m+5}"]
        out += prod_half(rm, 0, first=True)
        out += [f"v_exp_f32 v{rm.F[5]}, v{m+5}"]
        for T in range(1, 5):
            out.append(f"v_sub_f32 v{rm.F[T]}, v{NF_}, v{m+T}")
        for T in range(1, 5):
            out.append(f"v_exp_f32 v{rm.F[T]}, v{rm.F[T]}")
        out.append("s_nop 0")
        return out
    def inv_l(rm):
        return [f"v_add_f32 v{VL}, v{VL}, v{VL+1}",
                f"v_mov_b32 v{VT0}, v{VL}", "s_nop 1",
                f"v_permlane32_swap_b32 v{VL}, v{VT0}", "s_nop 1",
                f"v_add_f32 v{VL}, v{VL}, v{VT0}",
                f"v_rcp_f32 v{rm.INV}, v{VL}"]
    def ep_addr(rm):
        SW, SR, SO = rm.SW, rm.SR, rm.SO
        return [f"v_mbcnt_lo_u32_b32 v{VT0}, -1, 0",
                f"v_mbcnt_hi_u32_b32 v{VT0}, -1, v{VT0}",
                f"v_and_b32 v{SR}, 31, v{VT0}",
                f"v_mul_u32_u24 v{SW}, {STG_PITCH}, v{SR}",
                f"v_lshrrev_b32 v{SR}, 5, v{VT0}",
                f"v_lshl_add_u32 v{SW}, v{SR}, 3, v{SW}",
                f"v_add_u32 v{SW}, s{S_STG}, v{SW}",
                f"v_lshrrev_b32 v{SO}, 3, v{VT0}",
                f"v_mul_u32_u24 v{SR}, {STG_PITCH}, v{SO}",
                f"v_and_b32 v{VT0}, 7, v{VT0}",
                f"v_lshl_add_u32 v{SR}, v{VT0}, 4, v{SR}",
                f"v_add_u32 v{SR}, s{S_STG}, v{SR}",
                f"v_mul_u32_u24 v{SO}, 384, v{SO}",
                f"v_lshl_add_u32 v{SO}, v{VT0}, 4, v{SO}"]
    def ep_scale(h, b, dest=None):
        rm = RMS[h]
        ops = []; pairs = []
        for dd in range(2):
            R = rm.O[2*b + dd]
            for gq in range(4):
                B = R + 4 * gq
                D = B if dest is None else dest + 2 * (4*dd + gq)
                for i in range(4):
                    ops.append(("v", f"v_mul_f32 v{B+i}, v{rm.INV}, v{B+i}"))
                ops.append(("v", f"v_cvt_pk_bf16_f32 v{D}, v{B}, v{B+1}"))
                ops.append(("v", f"v_cvt_pk_bf16_f32 v{D+1}, v{B+2}, v{B+3}"))
                pairs.append(D)
        return ops, pairs
    def ep_write(h, b, pairs, off=0):
        out = []
        o = f" offset:{off}" if off else ""
        for k, D in enumerate(pairs):
            if k == 0:
                out.append([("dsw", f"ds_write_b64 v{SWR}, v[{D}:{D+1}]{o}", ("ow", h, b))])
            else:
                out.append([("v", f"v_xor_b32 v{VT0}, {16*k}, v{SWR}"),
                            ("dsw", f"ds_write_b64 v{VT0}, v[{D}:{D+1}]{o}", ("ow", h, b))])
        return out
    def ep_rd(h, b, i, T, off=0):
        return ("dsr", f"ds_read_b128 v[{T}:{T+3}], v{SRR} offset:{off + i*1024}", ("or", h, b, i))
    def ep_st(h, b, i, T):
        return [("wl", ("or", h, b, i)),
                ("s", f"s_add_u32 s{S_ST}, s{S_OB[h]}, {3072*i}"),
                ("st", f"buffer_store_dwordx4 v[{T}:{T+3}], v{SOR}, s[{SRD_O}:{SRD_O+3}], s{S_ST} offen offset:{128*b}{fl['O%d' % h]}", ("O", h))]
    def interleave_writes(ops, pairs, h, b, off=0):
        out = []
        w = ep_write(h, b, pairs, off)
        for k in range(8):
            out += ops[6*k:6*k+6] + w[k]
        return out
    def emit_op(op):
        if isinstance(op, str):
            e(op); return
        k = op[0]
        if k in ("v", "s"): e(op[1])
        elif k in ("dsw", "dsr"): e(op[1]); g.lg_issue(op[2])
        elif k == "wl": e(f"s_waitcnt lgkmcnt({g.lg_wait(op[1])})")
        elif k == "st":
            if opt.skip_o is not None and op[2][1] in opt.skip_o: return
            e(op[1]); g.vm_issue(op[2])
        elif k == "sync": sync(op[1])
        elif k == "qdma": q_dma(op[1], op[2], op[3], op[4])
        elif k == "qrd": q_rd(op[1], op[2], op[3], op[4])
        elif k == "rel": st["done"].append(op[1])
        elif k == "stamp": stamp(op[1])
        else: raise ValueError(op)

    items = []
    def spread(ops, lo, hi):
        n = hi - lo
        assert n > 0
        for k, op in enumerate(ops):
            idx = lo + (k * n) // len(ops)
            if k > 0 and isinstance(op, tuple) and op[0] == "dsw" and f"v{VT0}," in op[1]:
                idx = last_idx
            items[idx]["post"].append(op)
            last_idx = idx

    base = {}
    for h in range(2):
        rm = RMS[h]
        base[(h, "K")] = len(items)
        for t in range(4):
            n = tid[(h, "K", t)]
            korder = [(u, s) for u in range(2) for s in range(12)]
            if h == 0 and t == 0:
                korder = [(u, s) for cb in range(3) for u in range(2) for s in range(4*cb, 4*cb+4)]
            for u, s in korder:
                if True:
                    d = rm.S[2 * t + u]
                    items.append(dict(tile=n,
                        reads=[f"ds_read_b128 v[{{fr}}:{{fr3}}], v{AB + (s & 3)} offset:{(s >> 2)*8192 + u*4096}"],
                        mfma=f"v_mfma_f32_32x32x16_bf16 v[{d}:{d+15}], v[{{fr}}:{{fr3}}], v[{rm.q(s)}:{rm.q(s)+3}], " + ("0" if s == 0 else f"v[{d}:{d+15}]"),
                        pre=[], post=[]))
        base[(h, "V")] = len(items)
        for t in range(4):
            n = tid[(h, "V", t)]
            if t < 3:
                order = [(ks, dt) for ks in range(4) for dt in range(6)]
            elif h == 1 and opt.dtmajor:
                order = [(ks, dt) for b in (2, 1, 0) for dt in (2*b, 2*b+1) for ks in range(4)]
            else:
                order = [(ks, dt) for ks in range(2) for dt in range(6)] + \
                        [(ks, dt) for b in (2, 1, 0) for dt in (2*b, 2*b+1) for ks in (2, 3)]
            for ks, dt in order:
                d = rm.O[dt]
                H = 4 * t + ks
                pk = rm.half(H)
                first = (t == 0 and ks == 0)
                items.append(dict(tile=n,
                    reads=[f"ds_read_b64_tr_b16 v[{{fr}}:{{fr1}}], v{AB + 2*(dt & 1)} offset:{(dt >> 1)*8192 + ks*2048}",
                           f"ds_read_b64_tr_b16 v[{{fr2}}:{{fr3}}], v{AB + 2*(dt & 1) + 1} offset:{(dt >> 1)*8192 + ks*2048 + 1024}"],
                    mfma=f"v_mfma_f32_32x32x16_bf16 v[{d}:{d+15}], v[{{fr}}:{{fr3}}], v[{pk}:{pk+3}], " + ("0" if first else f"v[{d}:{d+15}]"),
                    pre=[], post=[]))
    NI = len(items)
    for h in range(2):
        rm = RMS[h]
        K0 = base[(h, "K")]; V0 = base[(h, "V")]
        comp = [12 * T + 11 for T in range(8)]
        if h == 0:
            comp[0] = 19; comp[1] = 23
        for T in range(7):
            lo = K0 + comp[T] + 5
            spread(max_tile(rm, T), lo, lo + 4)
        for T in range(6):
            lo = K0 + comp[T] + 9
            spread(exp_ops(rm, T, rm.MT + T), lo, lo + 12)
        items[V0]["pre"] += sm_head(rm)
        for H in range(1, 12):
            spread(prod_half(rm, H), V0 + 6*(H-1), V0 + 6*H - 1)
        e6 = exp_ops(rm, 6, NF_); e7 = exp_ops(rm, 7, NF_)
        if h == 1 and opt.dtmajor:
            spread(e6, V0 + 0, V0 + 48)
            spread(e7, V0 + 6, V0 + 56)
        else:
            spread(e6, V0 + 0, V0 + 58)
            spread(e7, V0 + 6, V0 + 64)
    def at(idx, ops):
        items[idx]["post"] += ops
    def spread_groups(groups, lo, hi):
        n = hi - lo
        for k, grp in enumerate(groups):
            items[lo + (k * n) // len(groups)]["post"] += grp
    for h in range(2):
        rm = RMS[h]
        V0 = base[(h, "V")]
        if h == 0 or not opt.dtmajor:
            spread(prod_half(rm, 12), V0 + 66, V0 + 71)
            spread(prod_half(rm, 13), V0 + 72, V0 + 77)
            spread(prod_half(rm, 14), V0 + 72, V0 + 83)
            spread(prod_half(rm, 15), V0 + 73, V0 + 83)
            at(V0 + 84, inv_l(rm))
        else:
            spread(prod_half(rm, 12), V0 + 52, V0 + 62)
            spread(prod_half(rm, 13), V0 + 56, V0 + 66)
            spread(prod_half(rm, 14), V0 + 60, V0 + 70)
            spread(prod_half(rm, 15), V0 + 62, V0 + 71)
            at(V0 + 72, inv_l(rm))
    rmA, rmB = RMS
    V0 = base[(0, "V")]; K1 = base[(1, "K")]; V1 = base[(1, "V")]
    T0, T1 = 216, 220
    ops2, p2 = ep_scale(0, 2)
    spread(interleave_writes(ops2, p2, 0, 2), V0 + 91, K1 + 8)
    ops1, p1 = ep_scale(0, 1)
    spread(interleave_writes(ops1, p1, 0, 1, ZOFF), K1 + 8, K1 + 19)
    def rdst(h, b, i, T, ir, ist, off=0):
        at(ir, [ep_rd(h, b, i, T, off)])
        at(ist, ep_st(h, b, i, T))
    H2 = rmB.half(2) + 4; H3 = rmB.half(3) + 4; H4 = rmB.half(4) + 4; H5 = rmB.half(5) + 4
    sched = [int(x) for x in opt.osched.split(",")]
    ready = {H2: V1 + 11, H3: V1 + 17, H4: V1 + 23, H5: V1 + 29}
    busy = {T0: -1, T1: -1, H2: -1, H3: -1, H4: -1, H5: -1}
    tmap = {}
    for it0 in sorted(sched):
        it = K1 + it0
        cands = [T0, T1] if it0 < 98 else [t for t in (H2, H3, H4, H5) if it - 5 > ready[t]]
        cands = [t for t in cands if busy[t] + 2 < it - 5]
        assert cands, it0
        tmap[it0] = cands[0]; busy[cands[0]] = it
    assert len(set(sched)) == 12
    def temp_for(it, k): return tmap[it - K1]
    def min_ok(it, T): pass
    for k in range(4):
        it = K1 + sched[k]; T = temp_for(it, k); min_ok(it, T)
        rdst(0, 2, k, T, it - 5, it, 0)
    b0_lo = K1 + max(sched[3] - 4, 19)
    ops0, p0 = ep_scale(0, 0)
    spread(ops0, K1 + 19, K1 + 31)
    b0_lo = max(b0_lo, K1 + 31)
    spread_groups(ep_write(0, 0, p0), b0_lo, b0_lo + 8)
    assert b0_lo + 8 <= K1 + 58
    for k in range(4):
        it = K1 + sched[4 + k]; T = temp_for(it, k); min_ok(it, T)
        rdst(0, 1, k, T, it - 5, it, ZOFF)
    for k in range(4):
        it = K1 + sched[8 + k]; T = temp_for(it, k); min_ok(it, T)
        assert it - 5 >= b0_lo + 8
        rdst(0, 0, k, T, it - 5, it, 0)
    assert K1 + sched[11] < V1 + 80
    K0 = base[(0, "K")]
    for i in range(4): at(K0 + 1 + i, [("qdma", 0, 2, i, S_STG)])
    at(K0 + 5, [("qrd", 0, 1, S_ZB, 176)])
    items[K0 + 8]["pre"] += [("wl", ("q", 0, 1))]
    at(K0 + 13, [("qrd", 0, 2, S_STG, 176)])
    items[K0 + 16]["pre"] += [("wl", ("q", 0, 2))]
    for i in range(4): at(K0 + opt.qb0_at + opt.qb_sp*i, [("qdma", 1, 0, i, S_STG)])
    for i in range(4): at(K0 + opt.qb1_at + opt.qb_sp*i, [("qdma", 1, 1, i, S_ZB)])
    at(V0 + 24, [("qrd", 1, 0, S_STG, rmA.QA)])
    at(V0 + 29, [("wl", ("q", 1, 0))])
    for i in range(4): at(V0 + 29 + opt.qc2_sp * i, [("qdma", 1, 2, i, S_STG)])
    at(V0 + 36, [("qrd", 1, 1, S_ZB, rmA.QA)])
    at(V0 + opt.qc2_at, [("qrd", 1, 2, S_STG, rmA.QA)])
    items[K1 + 0]["pre"] += [("wl", ("q", 1, 0)), ("wl", ("q", 1, 1))]
    items[K1 + 8]["pre"] += [("wl", ("q", 1, 2))]
    if opt.stamp != 3:
        at(V0 + 95, [("stamp", "endA")])
    TB = [rmB.S[1] + 4*k for k in range(4)] + [rmB.S[2] + 4*k for k in range(4)] + [rmB.S[3] + 4*k for k in range(4)]
    tail = []
    if opt.dtmajor:
        c2 = V1 + 79; c1 = V1 + 87
    else:
        c2 = V1 + 87; c1 = V1 + 91
    o2, q2 = ep_scale(1, 2); o1, q1 = ep_scale(1, 1); o0, q0 = ep_scale(1, 0)
    A2 = interleave_writes(o2, q2, 1, 2)
    R2 = [ep_rd(1, 2, i, TB[i]) for i in range(4)]
    S2 = sum([ep_st(1, 2, i, TB[i]) for i in range(4)], [])
    A1 = interleave_writes(o1, q1, 1, 1, ZOFF)
    R1 = [ep_rd(1, 1, i, TB[4+i], ZOFF) for i in range(4)]
    S1 = sum([ep_st(1, 1, i, TB[4+i]) for i in range(4)], [])
    A0 = interleave_writes(o0, q0, 1, 0)
    R0 = [ep_rd(1, 0, i, TB[8+i]) for i in range(4)]
    S0 = sum([ep_st(1, 0, i, TB[8+i]) for i in range(4)], [])
    assert opt.dtmajor
    spread(A2, c2 + 4, c2 + 12)
    at(c2 + 12, R2)
    k1 = 28
    spread(A1[:27], c1 + 4, V1 + 96)
    tail = A1[27:] + S2[:6] + R1 + A0[:27] + S2[6:] + A0[27:] + S1 + R0 + S0
    def fmt(s, i):
        fr = FR + 4 * (i % NF)
        return s.format(fr=fr, fr1=fr + 1, fr2=fr + 2, fr3=fr + 3)
    def issue_reads(j):
        it = items[j]
        if j == 0 or items[j - 1]["tile"] != it["tile"]:
            sync(it["tile"])
            set_ab(it["tile"])
        for r in it["reads"]:
            if opt.memonly == 2:
                g.lg_issue(("f", j)); g.lg.pop(); g.lg.append(("f", j)); continue
            e(fmt(r, j)); g.lg_issue(("f", j))
    st["initems"] = True
    sync(0)
    for i in range(4): q_dma(0, 1, i, S_ZB)
    q_rd(0, 0, S_STG, 176)
    set_ab(0)
    first_done = True
    for j in range(NF - 1):
        for r in items[j]["reads"]:
            e(fmt(r, j)); g.lg_issue(("f", j))
    items[0]["pre"] = [("wl", ("q", 0, 0))] + items[0]["pre"]
    def dma_delay(n):
        if n <= 1: return 0
        if opt.delays: return int(opt.delays[n], 36)
        return opt.dmadelay
    st["initems"] = True
    last_dma = opt.k1_at - opt.dmagap
    for i, it in enumerate(items):
        if opt.prio and i % 6 == 0:
            ph = (i + NF - 1) % 24
            if ph < 6:
                pass
        if opt.prio:
            ph = (i + NF - 1) % 24
            if ph % 6 == 0:
                e(f"s_setprio {3 - ph // 6}")
        st["cur_item"] = i
        for (qn, qi) in list(st["qdone"]):
            if i >= qi:
                st["done"].append(qn); st["qdone"].remove((qn, qi))
        if not opt.memonly:
            for op in it["pre"]: emit_op(op)
        e(f"s_waitcnt lgkmcnt({g.lg_wait(('f', i))})")
        if not opt.memonly:
            e(fmt(it["mfma"], i))
        if i + 1 == NI or items[i + 1]["tile"] != it["tile"]:
            st["done"].append(it["tile"])
        j = i + NF - 1
        if j < NI: issue_reads(j)
        if pend and i - last_dma >= opt.dmagap and (i + NF - 1) >= pend_t[pend[0]] + dma_delay(pend[0][0]):
            emit_dma(); last_dma = i
        for op in it["post"]:
            if opt.memonly and (isinstance(op, str) or op[0] == "v"):
                if isinstance(op, str) and ("mbcnt" in op or "u32" in op or "v_and" in op or "v_lshr" in op):
                    emit_op(op)
                continue
            emit_op(op)
    assert not pend
    stamp("mfma_done")
    for op in tail:
        if opt.memonly and op[0] == "v": continue
        emit_op(op)
    if opt.stamp != 3: stamp("ep_done")
    if opt.padto:
        e("s_waitcnt vmcnt(0)")
        g.label("L_spin")
        e("s_sleep 2")
        e("s_memrealtime s[50:51]")
        e("s_waitcnt lgkmcnt(0)")
        e("s_sub_u32 s52, s50, s48")
        e(f"s_cmp_lt_u32 s52, {opt.padto}")
        e("s_cbranch_scc1 L_spin")
    if opt.stamp:
        e("s_waitcnt vmcnt(0)")
        stamp("end")
        e("s_memtime s[46:47]")
        e("s_waitcnt lgkmcnt(0)")
        e("s_mov_b32 s42, 0x10000000")
        e("s_mov_b32 s43, 0x00020000")
        e("s_lshl_b32 s33, s2, 3")
        e(f"s_add_u32 s33, s33, s{S_W}")
        e("s_lshl_b32 s33, s33, 8")
        e("v_mov_b32 v1, 0")
        for i in range(len(stamps)):
            e(f"v_mov_b32 v0, s{48+2*i}")
            e(f"buffer_store_dword v0, v1, s[40:43], s33 offen offset:{4*i}")
        e("s_sub_u32 s46, s46, s44")
        e("v_mov_b32 v0, s46")
        e(f"buffer_store_dword v0, v1, s[40:43], s33 offen offset:{4*len(stamps)}")
        print("nstamps", len(stamps), "stamps:", " ".join(stamps), file=sys.stderr)
        assert 48 + 2 * len(stamps) <= 102
    g.label("L_end")
    e("s_endpgm")

    out = HEADER
    out += f"; @launch grid=(256,1,1) block=(512,1,1) lds={LDS_BYTES}\n"
    out += '.amdgcn_target "amdgcn-amd-amdhsa--gfx950"\n.text\n'
    out += f".globl {NAME}\n.p2align 8\n.type {NAME},@function\n{NAME}:\n"
    out += "\n".join(g.L) + "\n"
    out += f""".section .rodata,"a"
.p2align 6
.amdhsa_kernel {NAME}
  .amdhsa_next_free_vgpr 256
  .amdhsa_next_free_sgpr {102 if (opt.stamp or opt.padto or opt.rot) else 48}
  .amdhsa_accum_offset 256
  .amdhsa_group_segment_fixed_size 0
  .amdhsa_kernarg_size 48
  .amdhsa_user_sgpr_count 2
  .amdhsa_user_sgpr_kernarg_segment_ptr 1
  .amdhsa_system_sgpr_workgroup_id_x 1
.end_amdhsa_kernel
"""
    return out

if __name__ == "__main__":
    ap = argparse.ArgumentParser()
    ap.add_argument("-o", default="standalone__mha_softmax__near_ridge.s")
    ap.add_argument("--nslot", type=int, default=4)
    ap.add_argument("--nf", type=int, default=4)
    ap.add_argument("--look", type=int, default=2)
    ap.add_argument("--pro", type=int, default=3)
    ap.add_argument("--fl_q", default="")
    ap.add_argument("--fl_k", default="")
    ap.add_argument("--fl_v", default="")
    ap.add_argument("--fl_o", default="")
    ap.add_argument("--headmap", type=int, default=0)
    ap.add_argument("--stamp", type=int, default=0)
    ap.add_argument("--dmagap", type=int, default=3)
    ap.add_argument("--prio", type=int, default=0)
    ap.add_argument("--memonly", type=int, default=0)
    ap.add_argument("--fl_oa", default=None)
    ap.add_argument("--fl_ob", default=None)
    ap.add_argument("--wbl2", type=int, default=0)
    ap.add_argument("--wbl2_at", type=int, default=3)
    ap.add_argument("--fakemem", type=int, default=0)
    ap.add_argument("--badstg", type=int, default=0)
    ap.add_argument("--nowait", type=int, default=0)
    ap.add_argument("--stampdma", type=int, default=0)
    ap.add_argument("--rot", type=int, default=0)
    ap.add_argument("--skip_o", type=lambda x: [int(c) for c in x], default=None)
    ap.add_argument("--nobar", type=int, default=0)
    ap.add_argument("--dtmajor", type=int, default=1)
    ap.add_argument("--korder", default="u")
    ap.add_argument("--qc2_at", type=int, default=84)
    ap.add_argument("--k1_at", type=int, default=6)
    ap.add_argument("--qb0_at", type=int, default=50)
    ap.add_argument("--qb1_at", type=int, default=74)
    ap.add_argument("--qb_sp", type=int, default=4)
    ap.add_argument("--looks", default="")
    ap.add_argument("--dmadelay", type=int, default=0)
    ap.add_argument("--delays", default="")
    ap.add_argument("--osched", default="14,22,30,38,50,62,74,86,114,126,138,150")
    ap.add_argument("--codepf", type=int, default=0)
    ap.add_argument("--qc2_sp", type=int, default=1)
    ap.add_argument("--prebar", type=int, default=0)
    ap.add_argument("--prebar_from", type=int, default=1)
    ap.add_argument("--padto", type=int, default=0)
    opt = ap.parse_args()
    open(opt.o, "w").write(build(opt))
```

```python
import sys, math, struct, argparse

HEADER = """; Kernarg layout for this problem (48 bytes, ptrs only, base s[0:1]):
;   offset   0: d_in[0] q  shape=(16, 32, 256, 192) dtype=bfloat16 strides=(3145728, 98304, 384, 2) contiguous=True
;   offset   8: d_in[1] k  shape=(16, 32, 256, 192) dtype=bfloat16 strides=(3145728, 98304, 384, 2) contiguous=True
;   offset  16: d_in[2] v  shape=(16, 32, 256, 192) dtype=bfloat16 strides=(3145728, 98304, 384, 2) contiguous=True
"""
NAME = "standalone__mha_softmax__near_ridge_kernel"
HEAD_BYTES = 256 * 384
TILE_BYTES = 64 * 384
TOTAL_BYTES = 512 * HEAD_BYTES
STG_PITCH = 128
STG_WAVE = 32 * STG_PITCH
STG0 = 4 * TILE_BYTES
LDS_BYTES = STG0 + 8 * 2 * STG_WAVE
ZOFF = STG_WAVE
S_ZB = 4
S_QW = 5
S_X0, S_X1 = 6, 7
S_ZC = 8
S_T2 = 9

def f32bits(x):
    return struct.unpack("<I", struct.pack("<f", x))[0]

FR = 224
SWR, SRR, SOR, INVR = 240, 241, 242, 243
VD = 244
AB = 245
KB0 = 249
NF_ = 250
VB0 = 251
VL = 252
VT0, VT1 = 254, 255
SRD_Q, SRD_K, SRD_V, SRD_O = 12, 16, 20, 24
S_W1024 = 28
S_HEAD = [29, 30]
S_TOFF = 31
S_NC = 32
S_WH = 34
S_U = 35
S_STG = 36
S_SO = 37
S_ST = 38
S_OB = [39, 33]
S_W = 3

class RM:
    def __init__(self, S, Q, O, MT):
        self.S = [16 * b for b in S]
        self.Q = [16 * b for b in Q]
        self.O = [16 * b for b in O]
        self.MT = 16 * MT
        s0 = self.S[0]
        self.F = {1: s0 + 4, 2: s0 + 5, 3: s0 + 6, 4: s0 + 7, 5: VT1}
        self.QA = s0
        self.SW, self.SR, self.SO, self.INV = SWR, SRR, SOR, INVR
    def q(self, s):
        return self.Q[s // 4] + 4 * (s % 4)
    def half(self, H):
        return self.S[H >> 1] + 8 * (H & 1)
RMS = [RM([0,1,2,3,4,5,6,7], [8,9,10], [8,9,10,11,12,13], 13),
       RM([4,5,6,7,0,8,9,10], [1,2,3], [1,2,3,11,12,13], 13)]

class Gen:
    def __init__(self):
        self.L = []; self.vm = []; self.lg = []
    def e(self, s): self.L.append("    " + s)
    def c(self, s): self.L.append("    ; " + s)
    def label(self, s): self.L.append(s + ":")
    def vm_issue(self, tag): self.vm.append(tag)
    def vm_wait(self, tags):
        last = -1
        for i, t in enumerate(self.vm):
            if t in tags: last = i
        assert last >= 0, tags
        return min(63, len(self.vm) - 1 - last)
    def lg_issue(self, tag): self.lg.append(tag)
    def lg_wait(self, tag):
        last = -1
        for i, t in enumerate(self.lg):
            if t == tag: last = i
        assert last >= 0, tag
        return min(15, len(self.lg) - 1 - last)

def build(opt):
    g = Gen(); e = g.e
    NS, NF, LOOK = opt.nslot, opt.nf, opt.look
    assert FR + 4 * NF <= SWR
    assert NS == 4 and LDS_BYTES == 163840
    fl = {"Q": opt.fl_q, "K": opt.fl_k, "V": opt.fl_v, "O": opt.fl_o}
    fl["O0"] = opt.fl_o if opt.fl_oa is None else opt.fl_oa
    fl["O1"] = opt.fl_o if opt.fl_ob is None else opt.fl_ob
    fl = {k: ((" " + v.replace("+", " ")) if v else "") for k, v in fl.items()}
    c = (192 ** -0.5) * math.log2(math.e)
    CLIT = f"0x{f32bits(c):08x}"
    stamps = []
    def stamp(name):
        if not opt.stamp: return
        if opt.stamp == 3:
            i = len(stamps); stamps.append(name + "_t"); stamps.append(name + "_c")
            e(f"s_memrealtime s[{48+2*i}:{49+2*i}]")
            e(f"s_memtime s[{50+2*i}:{51+2*i}]")
            return
        i = len(stamps); stamps.append(name)
        e(f"{'s_memtime' if opt.stamp == 2 else 's_memrealtime'} s[{48+2*i}:{49+2*i}]")

    tiles = [(0, "K", j) for j in range(4)] + [(0, "V", j) for j in range(4)] + \
            [(1, "K", j) for j in range(4)] + [(1, "V", j) for j in range(4)]
    tid = {t: i for i, t in enumerate(tiles)}
    NT = len(tiles)
    st = dict(issued=0, free=[0, 1, 2, 3], slot={}, done=[], released=set(), synced=-1, qdone=[], cur_item=0)

    e("s_cmp_ge_u32 s2, 256")
    e("s_cbranch_scc1 L_end")
    if opt.stamp:
        e("s_memtime s[44:45]")
        e("s_load_dwordx2 s[40:41], s[0:1], 40")
    stamp("start")
    if opt.padto:
        e("s_memrealtime s[48:49]")
    e("s_load_dwordx4 s[4:7], s[0:1], 0")
    e("s_load_dwordx4 s[8:11], s[0:1], 16")
    e("v_lshrrev_b32 v1, 6, v0")
    e("v_and_b32 v2, 63, v0")
    e(f"v_readfirstlane_b32 s{S_W}, v1")
    e("v_and_b32 v3, 31, v2")
    e("v_lshrrev_b32 v4, 5, v2")
    e("v_lshrrev_b32 v5, 3, v2")
    e("v_lshl_add_u32 v5, v1, 3, v5")
    e("v_bfe_u32 v6, v2, 4, 1")
    e("v_lshlrev_b32 v6, 2, v6")
    e("v_lshl_or_b32 v6, v4, 1, v6")
    e("v_and_b32 v7, 1, v1")
    e("v_or_b32 v6, v6, v7")
    e("v_and_b32 v7, 7, v2")
    e("v_xor_b32 v6, v6, v7")
    e("v_mul_u32_u24 v5, 384, v5")
    e(f"v_lshl_add_u32 v{VD}, v6, 4, v5")
    e(f"s_lshl_b32 s{S_W1024}, s{S_W}, 10")
    if opt.headmap == 0:
        e(f"s_mul_i32 s{S_HEAD[0]}, s2, {HEAD_BYTES}")
        e(f"s_add_u32 s{S_HEAD[1]}, s{S_HEAD[0]}, {256*HEAD_BYTES}")
    else:
        e(f"s_mul_i32 s{S_HEAD[0]}, s2, {2*HEAD_BYTES}")
        e(f"s_add_u32 s{S_HEAD[1]}, s{S_HEAD[0]}, {HEAD_BYTES}")
    if opt.fakemem:
        e(f"s_and_b32 s{S_HEAD[0]}, s2, 7")
        e(f"s_mul_i32 s{S_HEAD[0]}, s{S_HEAD[0]}, {HEAD_BYTES}")
        e(f"s_mov_b32 s{S_HEAD[1]}, s{S_HEAD[0]}")
    if opt.rot:
        if opt.rot == 1:
            e("s_and_b32 s90, s2, 3")
        elif opt.rot == 2:
            e("s_lshr_b32 s90, s2, 3")
            e("s_and_b32 s90, s90, 3")
        elif opt.rot == 3:
            e("s_lshr_b32 s90, s2, 3")
            e("s_add_u32 s90, s90, s2")
            e("s_and_b32 s90, s90, 3")
        for t in range(4):
            e(f"s_add_u32 s{96+t}, s90, {t}")
            e(f"s_and_b32 s{96+t}, s{96+t}, 3")
            e(f"s_mul_i32 s{92+t}, s{96+t}, {TILE_BYTES}")
    e("s_waitcnt lgkmcnt(0)")
    for srd, sp in ((SRD_Q, 4), (SRD_K, 6), (SRD_V, 8), (SRD_O, 10)):
        e(f"s_mov_b32 s{srd}, s{sp}")
        e(f"s_mov_b32 s{srd+1}, s{sp+1}")
        e(f"s_mov_b32 s{srd+2}, {TOTAL_BYTES}")
        e(f"s_mov_b32 s{srd+3}, 0x00020000")

    e(f"s_lshl_b32 s{S_T2}, s{S_W}, 13")
    e(f"s_add_u32 s{S_STG}, s{S_T2}, {STG0}")
    e(f"s_add_u32 s{S_ZB}, s{S_STG}, {ZOFF}")
    e(f"s_mul_i32 s{S_QW}, s{S_W}, {24*384}")
    e(f"s_and_b32 s{S_X0}, s{S_W}, 1")
    e(f"s_lshl_b32 s{S_X0}, s{S_X0}, 4")
    e(f"s_xor_b32 s{S_X1}, s{S_X0}, 16")
    def q_dma(h, c, i, zone):
        e(f"v_xor_b32 v{VT0}, s{S_X0 if i % 2 == 0 else S_X1}, v{VD}")
        e(f"s_add_u32 m0, s{zone}, {i*1024}")
        e(f"s_add_u32 s{S_TOFF}, s{S_HEAD[h]}, s{S_QW}")
        e(f"s_add_u32 s{S_TOFF}, s{S_TOFF}, {i*3072 + c*128}")
        e(f"buffer_load_dwordx4 v{VT0}, s[{SRD_Q}:{SRD_Q+3}], s{S_TOFF} offen{fl['Q']} lds")
        g.vm_issue(("Qd", h, c))
    def q_rd(h, c, zone, r0):
        rm = RMS[h]
        e(f"s_waitcnt vmcnt({g.vm_wait([('Qd', h, c)])})")
        e(f"v_add_u32 v{r0}, s{zone}, v{KB0}")
        for j in range(1, 4):
            e(f"v_xor_b32 v{r0+j}, {32*j}, v{r0}")
        for j in range(4):
            sidx = 4 * c + j
            e(f"ds_read_b128 v[{rm.q(sidx)}:{rm.q(sidx)+3}], v{r0+j}")
            g.lg_issue(("q", h, c))
    pend = []
    pend_t = {}
    def emit_dma():
        n, b = pend.pop(0)
        h, kind, t = tiles[n]
        slot = st["slot"][n]
        srd = {"Q": SRD_Q, "K": SRD_K, "V": SRD_V}[kind]
        e(f"s_add_u32 m0, s{S_W1024}, {slot*TILE_BYTES + b*8064}")
        if opt.rot:
            e(f"s_add_u32 s{S_TOFF}, s{S_HEAD[h]}, s{92+t}")
        else:
            e(f"s_add_u32 s{S_TOFF}, s{S_HEAD[h]}, {t*TILE_BYTES}")
        e(f"buffer_load_dwordx4 v{VD}, s[{srd}:{srd+3}], s{S_TOFF} offen offset:{128*b}{fl[kind]} lds")
        g.vm_issue(("T", n))
    def issue_next(now=True):
        n = st["issued"]
        slot = st["free"].pop(0)
        st["slot"][n] = slot
        st["issued"] += 1
        for b in range(3):
            pend.append((n, b))
            pend_t[(n, b)] = st["cur_item"] + NF - 1
        if now:
            while pend: emit_dma()
    def sync(n):
        assert n == st["synced"] + 1, (n, st["synced"])
        assert n < st["issued"], f"tile {n} not issued before its sync"
        st["synced"] = n
        h, kind, t = tiles[n]
        while any(p[0] <= n for p in pend):
            emit_dma()
        g.c(f"---- sync tile {n} ({kind}{t} head {h})")
        if not opt.nowait:
            e(f"s_waitcnt vmcnt({g.vm_wait([('T', n)])})")
        if opt.prebar and n >= opt.prebar_from:
            lk0 = int(opt.looks[n]) if opt.looks else LOOK
            while st["issued"] < NT and st["free"] and st["issued"] - (n + 1) < lk0:
                issue_next(now=True)
        if not (opt.nobar and st.get("initems")):
            e("s_barrier")
        if opt.stamp and (h, kind, t) in STAMP_AT:
            stamp(f"{kind}{t}{'AB'[h]}")
        if opt.wbl2 and (h, kind, t) == (1, "V", opt.wbl2_at):
            assert opt.wbl2_at == 3
            e(f"s_cmp_lt_u32 s2, {8*opt.wbl2}")
            e("s_cbranch_scc0 L_nowb")
            e(f"s_cmp_eq_u32 s{S_W}, 0")
            e("s_cbranch_scc0 L_nowb")
            e("buffer_wbl2 sc1")
            g.label("L_nowb")
        for d in st["done"]:
            if d not in st["released"]:
                st["released"].add(d)
                if d == "ZC": st["free"] += [2, 3]
                else: st["free"].append(st["slot"][d])
        lk = LOOK
        if opt.looks:
            lk = int(opt.looks[n])
        while st["issued"] < NT and st["free"] and st["issued"] - (n + 1) < lk:
            issue_next(now=(opt.dmagap == 0 or not st.get("initems")))
        if opt.stamp and opt.stampdma and (h, kind, t) in STAMP_AT:
            stamp(f"d{kind}{t}{'AB'[h]}")
    if opt.stamp == 3:
        STAMP_AT = {(0,"K",0),(0,"V",0),(0,"V",2),(1,"K",0),(1,"K",2),(1,"V",0)}
    elif opt.stampdma:
        STAMP_AT = {(0,"K",1),(0,"K",2),(0,"V",1),(0,"V",3),(1,"Q",3),(1,"K",0),(1,"K",1),(1,"K",2),(1,"K",3),(1,"V",0)}
    else:
      STAMP_AT = {(0,"Q",0),(0,"K",0),(0,"K",1),(0,"K",3),(0,"V",0),(0,"V",1),(0,"V",2),(0,"V",3),(1,"K",0),(1,"K",1),(1,"K",3),(1,"V",0),(1,"V",1),(1,"V",3)}

    issue_next()
    for i in range(4): q_dma(0, 0, i, S_STG)
    if opt.codepf:
        e("s_getpc_b64 s[10:11]")
        g.label("L_pc")
        e("s_lshr_b32 s9, s2, 3")
        e("s_lshl_b32 s9, s9, 3")
        e(f"s_add_u32 s9, s9, s{S_W}")
        e("s_lshl_b32 s9, s9, 7")
        e("s_min_u32 s9, s9, L_end-L_pc")
        e("s_load_dword s8, s[10:11], s9")

    e("v_bfe_u32 v5, v3, 1, 1")
    e("v_lshlrev_b32 v5, 2, v5")
    e("v_bfe_u32 v6, v3, 2, 1")
    e("v_lshl_or_b32 v5, v6, 1, v5")
    e("v_bfe_u32 v6, v3, 3, 1")
    e("v_or_b32 v5, v5, v6")
    e("v_xor_b32 v5, v5, v4")
    e("v_lshlrev_b32 v5, 4, v5")
    e(f"v_lshl_add_u32 v{KB0}, v3, 7, v5")
    e("v_bfe_u32 v5, v2, 2, 2")
    e("v_lshl_add_u32 v6, v4, 2, v5")
    e("v_lshlrev_b32 v6, 7, v6")
    e("v_bfe_u32 v7, v2, 4, 1")
    e("v_lshlrev_b32 v7, 1, v7")
    e("v_bfe_u32 v8, v2, 1, 1")
    e("v_or_b32 v7, v7, v8")
    e("v_bfe_u32 v8, v2, 3, 1")
    e("v_lshlrev_b32 v8, 2, v8")
    e("v_lshl_or_b32 v8, v4, 1, v8")
    e("v_xor_b32 v7, v7, v8")
    e("v_lshl_add_u32 v6, v7, 4, v6")
    e("v_and_b32 v7, 1, v2")
    e(f"v_lshl_add_u32 v{VB0}, v7, 3, v6")
    e(f"s_mov_b32 s{S_NC}, 0x{f32bits(-c):08x}")
    e(f"s_mul_i32 s{S_SO}, s{S_W}, {32*384}")
    e(f"s_add_u32 s{S_OB[0]}, s{S_HEAD[0]}, s{S_SO}")
    e(f"s_add_u32 s{S_OB[1]}, s{S_HEAD[1]}, s{S_SO}")
    e("v_and_b32 v5, 7, v3")
    e(f"v_lshlrev_b32 v{SWR}, 7, v3")
    e(f"v_lshl_add_u32 v{SWR}, v5, 4, v{SWR}")
    e(f"v_lshl_add_u32 v{SWR}, v4, 3, v{SWR}")
    e(f"v_add_u32 v{SWR}, s{S_STG}, v{SWR}")
    e(f"v_lshlrev_b32 v{SRR}, 4, v2")
    e(f"v_add_u32 v{SRR}, s{S_STG}, v{SRR}")
    e("v_lshrrev_b32 v5, 3, v2")
    e("v_and_b32 v6, 7, v2")
    e("v_xor_b32 v6, v6, v5")
    e(f"v_mul_u32_u24 v{SOR}, 384, v5")
    e(f"v_lshl_add_u32 v{SOR}, v6, 4, v{SOR}")
    if opt.stamp != 3: stamp("issued")

    def set_ab(n, r0=AB):
        h, kind, t = tiles[n]
        base = st["slot"][n] * TILE_BYTES
        if kind == "V":
            e(f"v_add_u32 v{r0}, {base}, v{VB0}")
            e(f"v_xor_b32 v{r0+1}, 16, v{r0}")
            e(f"v_xor_b32 v{r0+2}, 64, v{r0}")
            e(f"v_xor_b32 v{r0+3}, 0x50, v{r0}")
        else:
            e(f"v_add_u32 v{r0}, {base}, v{KB0}")
            if kind == "Q":
                e(f"v_add_u32 v{r0}, s{S_U}, v{r0}")
            for j in range(1, 4):
                e(f"v_xor_b32 v{r0+j}, {32*j}, v{r0}")

    lblc = [0]
    def q_read(n, r0):
        h, kind, j = tiles[n]
        rm = RMS[h]
        lblc[0] += 1
        lab = f"L_q{lblc[0]}"
        if opt.rot:
            e(f"s_cmp_eq_u32 s{S_WH}, s{96+j}")
        else:
            e(f"s_cmp_eq_u32 s{S_WH}, {j}")
        e(f"s_cbranch_scc0 {lab}")
        set_ab(n, r0)
        for s in range(12):
            e(f"ds_read_b128 v[{rm.q(s)}:{rm.q(s)+3}], v{r0 + (s & 3)} offset:{(s >> 2)*8192}")
        if not st.get("initems"):
            e("s_waitcnt lgkmcnt(0)")
            g.label(lab)
            st["done"].append(n)
        else:
            g.label(lab)
            st["qdone"].append((n, st["cur_item"] + NF + 1))

    def max_tile(rm, T):
        b = rm.S[T]; m = rm.MT + T
        out = [f"v_max3_f32 v{m}, v{b}, v{b+1}, v{b+2}"]
        for k in range(6):
            out.append(f"v_max3_f32 v{m}, v{m}, v{b+3+2*k}, v{b+4+2*k}")
        out.append(f"v_max_f32 v{m}, v{m}, v{b+15}")
        out.append(f"v_mul_f32 v{m}, s{S_NC}, v{m}")
        return out
    def exp_ops(rm, T, nreg):
        b = rm.S[T]
        Fm = lambda i: f"v_fmamk_f32 v{b+i}, v{b+i}, {CLIT}, v{nreg}"
        Ex = lambda i: f"v_exp_f32 v{b+i}, v{b+i}"
        out = [Fm(0), Fm(1)]
        for i in range(16):
            out.append(Ex(i))
            if i + 2 < 16: out.append(Fm(i + 2))
        return out
    def prod_half(rm, H, first=False):
        b = rm.half(H); T = H >> 1
        out = []
        if T <= 5:
            fr = rm.F[T] if T >= 1 else VT0
            for i in range(8):
                out.append(f"v_mul_f32 v{b+i}, v{fr}, v{b+i}")
        adds = []
        for i in range(8):
            if first and i < 2:
                adds.append(f"v_mov_b32 v{VL+i}, v{b+i}")
            else:
                adds.append(f"v_add_f32 v{VL+(i&1)}, v{VL+(i&1)}, v{b+i}")
        cv = [f"v_cvt_pk_bf16_f32 v{b+j}, v{b+2*j}, v{b+2*j+1}" for j in range(4)]
        for j in range(4):
            out += [adds[2*j], adds[2*j+1], cv[j]]
        return out
    def sm_head(rm):
        m = rm.MT
        out = ["s_nop 7", "s_nop 3"]
        out += max_tile(rm, 7)
        out += [f"v_min3_f32 v{NF_}, v{m}, v{m+1}, v{m+2}",
                f"v_min3_f32 v{NF_}, v{NF_}, v{m+3}, v{m+4}",
                f"v_min3_f32 v{NF_}, v{NF_}, v{m+5}, v{m+6}",
                f"v_min_f32 v{NF_}, v{NF_}, v{m+7}",
                f"v_mov_b32 v{VT0}, v{NF_}", "s_nop 1",
                f"v_permlane32_swap_b32 v{NF_}, v{VT0}", "s_nop 1",
                f"v_min_f32 v{NF_}, v{NF_}, v{VT0}",
                f"v_sub_f32 v{VT0}, v{NF_}, v{m}",
                f"v_exp_f32 v{VT0}, v{VT0}",
                f"v_sub_f32 v{m+5}, v{NF_}, v{m+5}"]
        out += prod_half(rm, 0, first=True)
        out += [f"v_exp_f32 v{rm.F[5]}, v{m+5}"]
        for T in range(1, 5):
            out.append(f"v_sub_f32 v{rm.F[T]}, v{NF_}, v{m+T}")
        for T in range(1, 5):
            out.append(f"v_exp_f32 v{rm.F[T]}, v{rm.F[T]}")
        out.append("s_nop 0")
        return out
    def inv_l(rm):
        return [f"v_add_f32 v{VL}, v{VL}, v{VL+1}",
                f"v_mov_b32 v{VT0}, v{VL}", "s_nop 1",
                f"v_permlane32_swap_b32 v{VL}, v{VT0}", "s_nop 1",
                f"v_add_f32 v{VL}, v{VL}, v{VT0}",
                f"v_rcp_f32 v{rm.INV}, v{VL}"]
    def ep_addr(rm):
        SW, SR, SO = rm.SW, rm.SR, rm.SO
        return [f"v_mbcnt_lo_u32_b32 v{VT0}, -1, 0",
                f"v_mbcnt_hi_u32_b32 v{VT0}, -1, v{VT0}",
                f"v_and_b32 v{SR}, 31, v{VT0}",
                f"v_mul_u32_u24 v{SW}, {STG_PITCH}, v{SR}",
                f"v_lshrrev_b32 v{SR}, 5, v{VT0}",
                f"v_lshl_add_u32 v{SW}, v{SR}, 3, v{SW}",
                f"v_add_u32 v{SW}, s{S_STG}, v{SW}",
                f"v_lshrrev_b32 v{SO}, 3, v{VT0}",
                f"v_mul_u32_u24 v{SR}, {STG_PITCH}, v{SO}",
                f"v_and_b32 v{VT0}, 7, v{VT0}",
                f"v_lshl_add_u32 v{SR}, v{VT0}, 4, v{SR}",
                f"v_add_u32 v{SR}, s{S_STG}, v{SR}",
                f"v_mul_u32_u24 v{SO}, 384, v{SO}",
                f"v_lshl_add_u32 v{SO}, v{VT0}, 4, v{SO}"]
    def ep_scale(h, b, dest=None):
        rm = RMS[h]
        ops = []; pairs = []
        for dd in range(2):
            R = rm.O[2*b + dd]
            for gq in range(4):
                B = R + 4 * gq
                D = B if dest is None else dest + 2 * (4*dd + gq)
                for i in range(4):
                    ops.append(("v", f"v_mul_f32 v{B+i}, v{rm.INV}, v{B+i}"))
                ops.append(("v", f"v_cvt_pk_bf16_f32 v{D}, v{B}, v{B+1}"))
                ops.append(("v", f"v_cvt_pk_bf16_f32 v{D+1}, v{B+2}, v{B+3}"))
                pairs.append(D)
        return ops, pairs
    def ep_write(h, b, pairs, off=0):
        out = []
        o = f" offset:{off}" if off else ""
        for k, D in enumerate(pairs):
            if k == 0:
                out.append([("dsw", f"ds_write_b64 v{SWR}, v[{D}:{D+1}]{o}", ("ow", h, b))])
            else:
                out.append([("v", f"v_xor_b32 v{VT0}, {16*k}, v{SWR}"),
                            ("dsw", f"ds_write_b64 v{VT0}, v[{D}:{D+1}]{o}", ("ow", h, b))])
        return out
    def ep_rd(h, b, i, T, off=0):
        return ("dsr", f"ds_read_b128 v[{T}:{T+3}], v{SRR} offset:{off + i*1024}", ("or", h, b, i))
    def ep_st(h, b, i, T):
        return [("wl", ("or", h, b, i)),
                ("s", f"s_add_u32 s{S_ST}, s{S_OB[h]}, {3072*i}"),
                ("st", f"buffer_store_dwordx4 v[{T}:{T+3}], v{SOR}, s[{SRD_O}:{SRD_O+3}], s{S_ST} offen offset:{128*b}{fl['O%d' % h]}", ("O", h))]
    def interleave_writes(ops, pairs, h, b, off=0):
        out = []
        w = ep_write(h, b, pairs, off)
        for k in range(8):
            out += ops[6*k:6*k+6] + w[k]
        return out
    def emit_op(op):
        if isinstance(op, str):
            e(op); return
        k = op[0]
        if k in ("v", "s"): e(op[1])
        elif k in ("dsw", "dsr"): e(op[1]); g.lg_issue(op[2])
        elif k == "wl": e(f"s_waitcnt lgkmcnt({g.lg_wait(op[1])})")
        elif k == "st":
            if opt.skip_o is not None and op[2][1] in opt.skip_o: return
            e(op[1]); g.vm_issue(op[2])
        elif k == "sync": sync(op[1])
        elif k == "qdma": q_dma(op[1], op[2], op[3], op[4])
        elif k == "qrd": q_rd(op[1], op[2], op[3], op[4])
        elif k == "rel": st["done"].append(op[1])
        elif k == "stamp": stamp(op[1])
        else: raise ValueError(op)

    items = []
    def spread(ops, lo, hi):
        n = hi - lo
        assert n > 0
        for k, op in enumerate(ops):
            idx = lo + (k * n) // len(ops)
            if k > 0 and isinstance(op, tuple) and op[0] == "dsw" and f"v{VT0}," in op[1]:
                idx = last_idx
            items[idx]["post"].append(op)
            last_idx = idx

    base = {}
    for h in range(2):
        rm = RMS[h]
        base[(h, "K")] = len(items)
        for t in range(4):
            n = tid[(h, "K", t)]
            korder = [(u, s) for u in range(2) for s in range(12)]
            if h == 0 and t == 0:
                korder = [(u, s) for cb in range(3) for u in range(2) for s in range(4*cb, 4*cb+4)]
            for u, s in korder:
                if True:
                    d = rm.S[2 * t + u]
                    items.append(dict(tile=n,
                        reads=[f"ds_read_b128 v[{{fr}}:{{fr3}}], v{AB + (s & 3)} offset:{(s >> 2)*8192 + u*4096}"],
                        mfma=f"v_mfma_f32_32x32x16_bf16 v[{d}:{d+15}], v[{{fr}}:{{fr3}}], v[{rm.q(s)}:{rm.q(s)+3}], " + ("0" if s == 0 else f"v[{d}:{d+15}]"),
                        pre=[], post=[]))
        base[(h, "V")] = len(items)
        for t in range(4):
            n = tid[(h, "V", t)]
            if t < 3:
                order = [(ks, dt) for ks in range(4) for dt in range(6)]
            elif h == 1 and opt.dtmajor:
                order = [(ks, dt) for b in (2, 1, 0) for dt in (2*b, 2*b+1) for ks in range(4)]
            else:
                order = [(ks, dt) for ks in range(2) for dt in range(6)] + \
                        [(ks, dt) for b in (2, 1, 0) for dt in (2*b, 2*b+1) for ks in (2, 3)]
            for ks, dt in order:
                d = rm.O[dt]
                H = 4 * t + ks
                pk = rm.half(H)
                first = (t == 0 and ks == 0)
                items.append(dict(tile=n,
                    reads=[f"ds_read_b64_tr_b16 v[{{fr}}:{{fr1}}], v{AB + 2*(dt & 1)} offset:{(dt >> 1)*8192 + ks*2048}",
                           f"ds_read_b64_tr_b16 v[{{fr2}}:{{fr3}}], v{AB + 2*(dt & 1) + 1} offset:{(dt >> 1)*8192 + ks*2048 + 1024}"],
                    mfma=f"v_mfma_f32_32x32x16_bf16 v[{d}:{d+15}], v[{{fr}}:{{fr3}}], v[{pk}:{pk+3}], " + ("0" if first else f"v[{d}:{d+15}]"),
                    pre=[], post=[]))
    NI = len(items)
    for h in range(2):
        rm = RMS[h]
        K0 = base[(h, "K")]; V0 = base[(h, "V")]
        comp = [12 * T + 11 for T in range(8)]
        if h == 0:
            comp[0] = 19; comp[1] = 23
        for T in range(7):
            lo = K0 + comp[T] + 5
            spread(max_tile(rm, T), lo, lo + 4)
        for T in range(6):
            lo = K0 + comp[T] + 9
            spread(exp_ops(rm, T, rm.MT + T), lo, lo + 12)
        items[V0]["pre"] += sm_head(rm)
        for H in range(1, 12):
            spread(prod_half(rm, H), V0 + 6*(H-1), V0 + 6*H - 1)
        e6 = exp_ops(rm, 6, NF_); e7 = exp_ops(rm, 7, NF_)
        if h == 1 and opt.dtmajor:
            spread(e6, V0 + 0, V0 + 48)
            spread(e7, V0 + 6, V0 + 56)
        else:
            spread(e6, V0 + 0, V0 + 58)
            spread(e7, V0 + 6, V0 + 64)
    def at(idx, ops):
        items[idx]["post"] += ops
    def spread_groups(groups, lo, hi):
        n = hi - lo
        for k, grp in enumerate(groups):
            items[lo + (k * n) // len(groups)]["post"] += grp
    for h in range(2):
        rm = RMS[h]
        V0 = base[(h, "V")]
        if h == 0 or not opt.dtmajor:
            spread(prod_half(rm, 12), V0 + 66, V0 + 71)
            spread(prod_half(rm, 13), V0 + 72, V0 + 77)
            spread(prod_half(rm, 14), V0 + 72, V0 + 83)
            spread(prod_half(rm, 15), V0 + 73, V0 + 83)
            at(V0 + 84, inv_l(rm))
        else:
            spread(prod_half(rm, 12), V0 + 52, V0 + 62)
            spread(prod_half(rm, 13), V0 + 56, V0 + 66)
            spread(prod_half(rm, 14), V0 + 60, V0 + 70)
            spread(prod_half(rm, 15), V0 + 62, V0 + 71)
            at(V0 + 72, inv_l(rm))
    rmA, rmB = RMS
    V0 = base[(0, "V")]; K1 = base[(1, "K")]; V1 = base[(1, "V")]
    T0, T1 = 216, 220
    ops2, p2 = ep_scale(0, 2)
    spread(interleave_writes(ops2, p2, 0, 2), V0 + 91, K1 + 8)
    ops1, p1 = ep_scale(0, 1)
    spread(interleave_writes(ops1, p1, 0, 1, ZOFF), K1 + 8, K1 + 19)
    def rdst(h, b, i, T, ir, ist, off=0):
        at(ir, [ep_rd(h, b, i, T, off)])
        at(ist, ep_st(h, b, i, T))
    H2 = rmB.half(2) + 4; H3 = rmB.half(3) + 4; H4 = rmB.half(4) + 4; H5 = rmB.half(5) + 4
    sched = [int(x) for x in opt.osched.split(",")]
    ready = {H2: V1 + 11, H3: V1 + 17, H4: V1 + 23, H5: V1 + 29}
    busy = {T0: -1, T1: -1, H2: -1, H3: -1, H4: -1, H5: -1}
    tmap = {}
    for it0 in sorted(sched):
        it = K1 + it0
        cands = [T0, T1] if it0 < 98 else [t for t in (H2, H3, H4, H5) if it - 5 > ready[t]]
        cands = [t for t in cands if busy[t] + 2 < it - 5]
        assert cands, it0
        tmap[it0] = cands[0]; busy[cands[0]] = it
    assert len(set(sched)) == 12
    def temp_for(it, k): return tmap[it - K1]
    def min_ok(it, T): pass
    for k in range(4):
        it = K1 + sched[k]; T = temp_for(it, k); min_ok(it, T)
        rdst(0, 2, k, T, it - 5, it, 0)
    b0_lo = K1 + max(sched[3] - 4, 19)
    ops0, p0 = ep_scale(0, 0)
    spread(ops0, K1 + 19, K1 + 31)
    b0_lo = max(b0_lo, K1 + 31)
    spread_groups(ep_write(0, 0, p0), b0_lo, b0_lo + 8)
    assert b0_lo + 8 <= K1 + 58
    for k in range(4):
        it = K1 + sched[4 + k]; T = temp_for(it, k); min_ok(it, T)
        rdst(0, 1, k, T, it - 5, it, ZOFF)
    for k in range(4):
        it = K1 + sched[8 + k]; T = temp_for(it, k); min_ok(it, T)
        assert it - 5 >= b0_lo + 8
        rdst(0, 0, k, T, it - 5, it, 0)
    assert K1 + sched[11] < V1 + 80
    K0 = base[(0, "K")]
    for i in range(4): at(K0 + 1 + i, [("qdma", 0, 2, i, S_STG)])
    at(K0 + 5, [("qrd", 0, 1, S_ZB, 176)])
    items[K0 + 8]["pre"] += [("wl", ("q", 0, 1))]
    at(K0 + 13, [("qrd", 0, 2, S_STG, 176)])
    items[K0 + 16]["pre"] += [("wl", ("q", 0, 2))]
    for i in range(4): at(K0 + opt.qb0_at + opt.qb_sp*i, [("qdma", 1, 0, i, S_STG)])
    for i in range(4): at(K0 + opt.qb1_at + opt.qb_sp*i, [("qdma", 1, 1, i, S_ZB)])
    at(V0 + 24, [("qrd", 1, 0, S_STG, rmA.QA)])
    at(V0 + 29, [("wl", ("q", 1, 0))])
    for i in range(4): at(V0 + 29 + opt.qc2_sp * i, [("qdma", 1, 2, i, S_STG)])
    at(V0 + 36, [("qrd", 1, 1, S_ZB, rmA.QA)])
    at(V0 + opt.qc2_at, [("qrd", 1, 2, S_STG, rmA.QA)])
    items[K1 + 0]["pre"] += [("wl", ("q", 1, 0)), ("wl", ("q", 1, 1))]
    items[K1 + 8]["pre"] += [("wl", ("q", 1, 2))]
    if opt.stamp != 3:
        at(V0 + 95, [("stamp", "endA")])
    TB = [rmB.S[1] + 4*k for k in range(4)] + [rmB.S[2] + 4*k for k in range(4)] + [rmB.S[3] + 4*k for k in range(4)]
    tail = []
    if opt.dtmajor:
        c2 = V1 + 79; c1 = V1 + 87
    else:
        c2 = V1 + 87; c1 = V1 + 91
    o2, q2 = ep_scale(1, 2); o1, q1 = ep_scale(1, 1); o0, q0 = ep_scale(1, 0)
    A2 = interleave_writes(o2, q2, 1, 2)
    R2 = [ep_rd(1, 2, i, TB[i]) for i in range(4)]
    S2 = sum([ep_st(1, 2, i, TB[i]) for i in range(4)], [])
    A1 = interleave_writes(o1, q1, 1, 1, ZOFF)
    R1 = [ep_rd(1, 1, i, TB[4+i], ZOFF) for i in range(4)]
    S1 = sum([ep_st(1, 1, i, TB[4+i]) for i in range(4)], [])
    A0 = interleave_writes(o0, q0, 1, 0)
    R0 = [ep_rd(1, 0, i, TB[8+i]) for i in range(4)]
    S0 = sum([ep_st(1, 0, i, TB[8+i]) for i in range(4)], [])
    assert opt.dtmajor
    spread(A2, c2 + 4, c2 + 12)
    at(c2 + 12, R2)
    k1 = 28
    spread(A1[:27], c1 + 4, V1 + 96)
    tail = A1[27:] + S2[:6] + R1 + A0[:27] + S2[6:] + A0[27:] + S1 + R0 + S0
    def fmt(s, i):
        fr = FR + 4 * (i % NF)
        return s.format(fr=fr, fr1=fr + 1, fr2=fr + 2, fr3=fr + 3)
    def issue_reads(j):
        it = items[j]
        if j == 0 or items[j - 1]["tile"] != it["tile"]:
            sync(it["tile"])
            set_ab(it["tile"])
        for r in it["reads"]:
            if opt.memonly == 2:
                g.lg_issue(("f", j)); g.lg.pop(); g.lg.append(("f", j)); continue
            e(fmt(r, j)); g.lg_issue(("f", j))
    st["initems"] = True
    sync(0)
    for i in range(4): q_dma(0, 1, i, S_ZB)
    q_rd(0, 0, S_STG, 176)
    set_ab(0)
    first_done = True
    for j in range(NF - 1):
        for r in items[j]["reads"]:
            e(fmt(r, j)); g.lg_issue(("f", j))
    items[0]["pre"] = [("wl", ("q", 0, 0))] + items[0]["pre"]
    def dma_delay(n):
        if n <= 1: return 0
        if opt.delays: return int(opt.delays[n], 36)
        return opt.dmadelay
    st["initems"] = True
    last_dma = opt.k1_at - opt.dmagap
    for i, it in enumerate(items):
        if opt.prio and i % 6 == 0:
            ph = (i + NF - 1) % 24
            if ph < 6:
                pass
        if opt.prio:
            ph = (i + NF - 1) % 24
            if ph % 6 == 0:
                e(f"s_setprio {3 - ph // 6}")
        st["cur_item"] = i
        for (qn, qi) in list(st["qdone"]):
            if i >= qi:
                st["done"].append(qn); st["qdone"].remove((qn, qi))
        if not opt.memonly:
            for op in it["pre"]: emit_op(op)
        e(f"s_waitcnt lgkmcnt({g.lg_wait(('f', i))})")
        if not opt.memonly:
            e(fmt(it["mfma"], i))
        if i + 1 == NI or items[i + 1]["tile"] != it["tile"]:
            st["done"].append(it["tile"])
        j = i + NF - 1
        if j < NI: issue_reads(j)
        if opt.roll:
            L0, G = [int(x) for x in opt.roll.split(",")]
            if pend:
                m, b = pend[0]
                due = (opt.k1_at + b) if m == 1 else (24 * m - (NF - 1) - L0 + G * b)
                if i >= due:
                    emit_dma(); last_dma = i
        elif pend and i - last_dma >= opt.dmagap and (i + NF - 1) >= pend_t[pend[0]] + dma_delay(pend[0][0]):
            emit_dma(); last_dma = i
        for op in it["post"]:
            if opt.memonly and (isinstance(op, str) or op[0] == "v"):
                if isinstance(op, str) and ("mbcnt" in op or "u32" in op or "v_and" in op or "v_lshr" in op):
                    emit_op(op)
                continue
            emit_op(op)
    assert not pend
    stamp("mfma_done")
    for op in tail:
        if opt.memonly and op[0] == "v": continue
        emit_op(op)
    if opt.stamp != 3: stamp("ep_done")
    if opt.padto:
        e("s_waitcnt vmcnt(0)")
        g.label("L_spin")
        e("s_sleep 2")
        e("s_memrealtime s[50:51]")
        e("s_waitcnt lgkmcnt(0)")
        e("s_sub_u32 s52, s50, s48")
        e(f"s_cmp_lt_u32 s52, {opt.padto}")
        e("s_cbranch_scc1 L_spin")
    if opt.stamp:
        e("s_waitcnt vmcnt(0)")
        stamp("end")
        e("s_memtime s[46:47]")
        e("s_waitcnt lgkmcnt(0)")
        e("s_mov_b32 s42, 0x10000000")
        e("s_mov_b32 s43, 0x00020000")
        e("s_lshl_b32 s33, s2, 3")
        e(f"s_add_u32 s33, s33, s{S_W}")
        e("s_lshl_b32 s33, s33, 8")
        e("v_mov_b32 v1, 0")
        for i in range(len(stamps)):
            e(f"v_mov_b32 v0, s{48+2*i}")
            e(f"buffer_store_dword v0, v1, s[40:43], s33 offen offset:{4*i}")
        e("s_sub_u32 s46, s46, s44")
        e("v_mov_b32 v0, s46")
        e(f"buffer_store_dword v0, v1, s[40:43], s33 offen offset:{4*len(stamps)}")
        print("nstamps", len(stamps), "stamps:", " ".join(stamps), file=sys.stderr)
        assert 48 + 2 * len(stamps) <= 102
    g.label("L_end")
    e("s_endpgm")

    out = HEADER
    out += f"; @launch grid=(256,1,1) block=(512,1,1) lds={LDS_BYTES}\n"
    out += '.amdgcn_target "amdgcn-amd-amdhsa--gfx950"\n.text\n'
    out += f".globl {NAME}\n.p2align 8\n.type {NAME},@function\n{NAME}:\n"
    out += "\n".join(g.L) + "\n"
    out += f""".section .rodata,"a"
.p2align 6
.amdhsa_kernel {NAME}
  .amdhsa_next_free_vgpr 256
  .amdhsa_next_free_sgpr {102 if (opt.stamp or opt.padto or opt.rot) else 48}
  .amdhsa_accum_offset 256
  .amdhsa_group_segment_fixed_size 0
  .amdhsa_kernarg_size 48
  .amdhsa_user_sgpr_count 2
  .amdhsa_user_sgpr_kernarg_segment_ptr 1
  .amdhsa_system_sgpr_workgroup_id_x 1
.end_amdhsa_kernel
"""
    return out

if __name__ == "__main__":
    ap = argparse.ArgumentParser()
    ap.add_argument("-o", default="standalone__mha_softmax__near_ridge.s")
    ap.add_argument("--nslot", type=int, default=4)
    ap.add_argument("--nf", type=int, default=4)
    ap.add_argument("--look", type=int, default=2)
    ap.add_argument("--pro", type=int, default=3)
    ap.add_argument("--fl_q", default="")
    ap.add_argument("--fl_k", default="")
    ap.add_argument("--fl_v", default="")
    ap.add_argument("--fl_o", default="")
    ap.add_argument("--headmap", type=int, default=0)
    ap.add_argument("--stamp", type=int, default=0)
    ap.add_argument("--dmagap", type=int, default=3)
    ap.add_argument("--prio", type=int, default=0)
    ap.add_argument("--memonly", type=int, default=0)
    ap.add_argument("--fl_oa", default=None)
    ap.add_argument("--fl_ob", default=None)
    ap.add_argument("--wbl2", type=int, default=0)
    ap.add_argument("--wbl2_at", type=int, default=3)
    ap.add_argument("--fakemem", type=int, default=0)
    ap.add_argument("--badstg", type=int, default=0)
    ap.add_argument("--nowait", type=int, default=0)
    ap.add_argument("--stampdma", type=int, default=0)
    ap.add_argument("--rot", type=int, default=0)
    ap.add_argument("--skip_o", type=lambda x: [int(c) for c in x], default=None)
    ap.add_argument("--nobar", type=int, default=0)
    ap.add_argument("--dtmajor", type=int, default=1)
    ap.add_argument("--korder", default="u")
    ap.add_argument("--qc2_at", type=int, default=84)
    ap.add_argument("--k1_at", type=int, default=6)
    ap.add_argument("--qb0_at", type=int, default=50)
    ap.add_argument("--qb1_at", type=int, default=74)
    ap.add_argument("--qb_sp", type=int, default=4)
    ap.add_argument("--looks", default="")
    ap.add_argument("--dmadelay", type=int, default=0)
    ap.add_argument("--delays", default="")
    ap.add_argument("--osched", default="14,22,30,38,50,62,74,86,114,126,138,150")
    ap.add_argument("--codepf", type=int, default=0)
    ap.add_argument("--qc2_sp", type=int, default=1)
    ap.add_argument("--prebar", type=int, default=0)
    ap.add_argument("--prebar_from", type=int, default=1)
    ap.add_argument("--roll", default="")
    ap.add_argument("--padto", type=int, default=0)
    opt = ap.parse_args()
    open(opt.o, "w").write(build(opt))
```
